```python
import torch

def _softmax(x, axis=-1):
    return torch.softmax(x, dim=axis)
def _gelu(x):
    return torch.nn.functional.gelu(x, approximate="tanh")
def _silu(x):
    return torch.nn.functional.silu(x)
def _sigmoid(x):
    return torch.sigmoid(x)
def _layernorm(x, axis=-1, eps=1e-5):
    m = x.mean(dim=axis, keepdim=True)
    v = x.var(dim=axis, keepdim=True, unbiased=False)
    return (x - m) / torch.sqrt(v + eps)
def _scatter_add(tgt, idx, src, axis=0):
    return tgt.clone().index_add_(axis, idx, src)
def _segment_sum(src, seg, n):
    out = torch.zeros((n,) + src.shape[1:], dtype=src.dtype)
    return out.index_add_(0, seg, src)
def _pad(x, pw):
    flat = tuple(v for pair in reversed(pw) for v in pair)
    return torch.nn.functional.pad(x, flat)

kernel_name = 'gated_mix__softmax_full_mha__mixer_channel_mlp__prompt'

def setup_inputs():

    _w = (lambda a: (lambda t: t.to(torch.bfloat16) if t.is_floating_point() else t)(torch.as_tensor(a)))
    def _A_setup():
        B, S, D = 1, 2048, 640
        return {
            "x": _w((lambda *s: torch.randn(*s, dtype=torch.bfloat16) * 0.05)(B, S, D)),
            "wqkv": _w((lambda *s: torch.randn(*s, dtype=torch.bfloat16) * 0.8)(D, 3 * D)),
            "wo": _w((lambda *s: torch.randn(*s, dtype=torch.bfloat16) * 0.1)(D, D)),
        }
    _A_in = _A_setup()

    def _B_setup():
        B, S, D, F = 1, 2048, 640, 1536
        return {
            "x": _w((lambda *s: torch.randn(*s, dtype=torch.bfloat16) * 0.05)(B, S, D)),
            "w1": _w((lambda *s: torch.randn(*s, dtype=torch.bfloat16) * 1.6)(D, F) * (D ** -0.5)),
            "b1": _w((lambda *s: torch.randn(*s, dtype=torch.bfloat16) * 1.6)(F)),
            "w2": _w((lambda *s: torch.randn(*s, dtype=torch.bfloat16) * 0.05)(F, D) * (F ** -0.5)),
            "b2": _w((lambda *s: torch.randn(*s, dtype=torch.bfloat16) * 0.05)(D)),
        }
    _B_in = _B_setup()

    return {
        "A_x": _A_in["x"],
        "A_wqkv": _A_in["wqkv"],
        "A_wo": _A_in["wo"],
        "B_x": _B_in["x"],
        "B_w1": _B_in["w1"],
        "B_b1": _B_in["b1"],
        "B_w2": _B_in["w2"],
        "B_b2": _B_in["b2"],
        "gate_w": _w((lambda *s: torch.randn(*s, dtype=torch.bfloat16) * 0.05)(640) * 16.0),
    }

def reference(A_x, A_wqkv, A_wo, B_x, B_w1, B_b1, B_w2, B_b2, gate_w):
    def _A_ref(x, wqkv, wo):
        B, S, D = x.shape
        H = 32; Dh = D // H
        qkv = (lambda x, *d: x.permute(*d))((x @ wqkv).reshape(B, S, 3, H, Dh), 2, 0, 3, 1, 4)
        q, k, v = qkv[0], qkv[1], qkv[2]
        scale = Dh ** -0.5
        scores = torch.einsum("bhqd,bhkd->bhqk", q, k) * scale
        p = _softmax(scores, axis=-1)
        o = torch.einsum("bhqk,bhkd->bhqd", p, v)
        return (lambda x, *d: x.permute(*d))(o, 0, 2, 1, 3).reshape(B, S, D) @ wo

    def _B_ref(x, w1, b1, w2, b2):
        y = _layernorm(x, axis=-1)
        h = _gelu(torch.einsum("bsd,df->bsf", y, w1) + b1)
        return torch.einsum("bsf,fd->bsd", h, w2) + b2

    x = A_x
    g = _sigmoid((x * gate_w).sum(-1, keepdims=True))
    a = _A_ref(x, A_wqkv, A_wo)
    b = _B_ref(x, B_w1, B_b1, B_w2, B_b2)
    return g * a + (1 - g) * b
```

```python
class Asm:
    def __init__(self):
        self.l = []
        self.uid = 0
    def __call__(self, s):
        for line in s.strip("\n").split("\n"):
            line = line.strip()
            if not line:
                continue
            if line.endswith(":"):
                self.l.append(line)
            else:
                self.l.append("    " + line)
    def label(self, n):
        self.l.append(n + ":")
    def c(self, s):
        self.l.append("    ; " + s)
    def new(self, p):
        self.uid += 1
        return "%s_%d" % (p, self.uid)
    def text(self):
        return "\n".join(self.l) + "\n"

def v(i, n=1):
    return "v%d" % i if n == 1 else "v[%d:%d]" % (i, i + n - 1)
def s(i, n=1):
    return "s%d" % i if n == 1 else "s[%d:%d]" % (i, i + n - 1)
def a(i, n=1):
    return "a%d" % i if n == 1 else "a[%d:%d]" % (i, i + n - 1)

def kernel_header(name):
    return (".globl %s\n.p2align 8\n.type %s,@function\n%s:\n" % (name, name, name))

def kernel_desc(name, nvgpr, nsgpr, accum=None):
    if accum is None:
        accum = (nvgpr + 3) // 4 * 4
    return (".amdhsa_kernel %s\n"
            "  .amdhsa_next_free_vgpr %d\n"
            "  .amdhsa_next_free_sgpr %d\n"
            "  .amdhsa_accum_offset %d\n"
            "  .amdhsa_group_segment_fixed_size 0\n"
            "  .amdhsa_kernarg_size 96\n"
            "  .amdhsa_user_sgpr_count 2\n"
            "  .amdhsa_user_sgpr_kernarg_segment_ptr 1\n"
            "  .amdhsa_system_sgpr_workgroup_id_x 1\n"
            ".end_amdhsa_kernel\n" % (name, nvgpr, nsgpr, accum))

B128_GROUPS = [
    [0,1,2,3,12,13,14,15,20,21,22,23,24,25,26,27],
    [4,5,6,7,8,9,10,11,16,17,18,19,28,29,30,31],
    [32,33,34,35,44,45,46,47,52,53,54,55,56,57,58,59],
    [36,37,38,39,40,41,42,43,48,49,50,51,60,61,62,63]]
def conflicts(addrs, width):
    if width == 16:
        groups = B128_GROUPS
    else:
        groups = [list(range(32)), list(range(32, 64))]
    extra = 0
    for g in groups:
        banks = {}
        for l in g:
            for b in range(width // 4):
                ad = addrs[l] + 4 * b
                banks.setdefault((ad // 4) % 64, set()).add(ad // 4)
        extra += max(len(x) for x in banks.values()) - 1
    return extra
```

```python
import sys
from common import *
import importlib
NAME = "gated_mix__softmax_full_mha__mixer_channel_mlp__prompt"
def header():
    return open("cdna_kernels/%s.s.ref" % NAME).read().split("; Override launch")[0]
def build(kgens, path, repeat=None):
    A = Asm()
    infos = []
    for g in kgens:
        infos.append(g(A))
    out = header()
    order = repeat if repeat else infos
    for k in order:
        out += "; @launch kernel=%s grid=(%d,1,1) block=(%d,1,1) lds=%d\n" % (k['name'], k['grid'], k['block'], k['lds'])
    out += '.amdgcn_target "amdgcn-amd-amdhsa--gfx950"\n.text\n'
    out += A.text()
    out += '.section .rodata,"a"\n'
    seen = set()
    for k in infos:
        if k['name'] in seen: continue
        seen.add(k['name'])
        out += ".p2align 6\n" + kernel_desc(k['name'], k['vgpr'], k['sgpr'], k.get('accum'))
    open(path, "w").write(out)
    return infos
if __name__ == "__main__":
    import k1
    build([k1.gen_k1], "t_k1.s")
```

```python
from asmlib import *
S_, D_, H_, DH, F_ = 2048, 640, 32, 20, 1536
KA_X, KA_WQKV, KA_WO, KA_BX, KA_W1, KA_B1, KA_W2, KA_B2, KA_GW, KA_OUT, KA_DBG, KA_WS = [8*i for i in range(12)]
CHUNK = 21504
HEADKV = 8*CHUNK
OFF_KHI = 8192
OFF_V = 10240
VT = 1408
VB = 352
WS_KV   = 0
WS_QLO  = 0x600000
WS_QHI  = 0x800000
WS_Y    = 0x900000
WS_G    = 0xC00000
WS_H    = 0xD00000
WS_O    = 0x1400000
WS_BMIX = 0x1800000
WS_END  = 0x1E00000
QSCALE = 1.4426950408889634 / (20 ** 0.5)
import struct
def f32(x):
    return "0x%08x" % struct.unpack("<I", struct.pack("<f", x))[0]

def wave_reduce_add(A, regs, tmps):
    n = len(regs)
    def pad(k):
        need = k - (n - 1)
        if need > 0:
            A("s_nop %d" % (need - 1))
    for sh in (8, 4, 2, 1):
        pad(2)
        for r in regs:
            A("v_add_f32_dpp %s, %s, %s row_ror:%d row_mask:0xf bank_mask:0xf" % (v(r), v(r), v(r), sh))
    for sw in ("v_permlane16_swap_b32", "v_permlane32_swap_b32"):
        for r, t in zip(regs, tmps):
            A("v_mov_b32 %s, %s" % (v(t), v(r)))
        pad(2)
        A("s_nop 0")
        for r, t in zip(regs, tmps):
            A("%s %s, %s" % (sw, v(r), v(t)))
        pad(1)
        A("s_nop 0")
        for r, t in zip(regs, tmps):
            A("v_add_f32 %s, %s, %s" % (v(r), v(r), v(t)))

WS_STAMP = 0x2000000
STAMPS = False
def stamp(A, idx):
    global STAMPS
    if not STAMPS: return
    lab = A.new("st")
    if idx > 0:
        A("s_cmp_lg_u32 s12, 0")
        A("s_cbranch_scc1 %s" % lab)
    A("s_memrealtime s[%d:%d]" % (64+4*idx, 65+4*idx))
    A("s_memtime s[%d:%d]" % (66+4*idx, 67+4*idx))
    if idx > 0:
        A.label(lab)
def stamp_flush(A, kid, nst, wavereg="s12", wave=0, wgreg="s2"):
    if not STAMPS: return
    lab = A.new("stf")
    A("s_waitcnt lgkmcnt(0)")
    A("s_cmp_lg_u32 %s, %d" % (wavereg, wave))
    A("s_cbranch_scc1 %s" % lab)
    A("s_mov_b64 exec, 1")
    A("s_lshl_b32 s100, %s, 7" % wgreg)
    A("s_add_u32 s100, s100, 0x%x" % (WS_STAMP + kid*0x20000 + wave*0))
    A("v_mov_b32 v0, s100")
    for i in range(nst):
        for j in range(4):
            A("v_mov_b32 v%d, s%d" % (2+j, 64+4*i+j))
        A("global_store_dwordx4 v0, v[2:5], s[10:11] offset:%d" % (16*i))
        A("s_nop 1")
    A("s_mov_b64 exec, -1")
    A.label(lab)

def loader_loop(A, issue, NCH, NSLOT, per):
    first = min(2, NSLOT, NCH)
    issued = 0
    for c in range(first):
        issue(c); issued += 1
    for c in range(NCH):
        A("s_waitcnt vmcnt(%d)" % (per*(issued - c - 1)))
        A("s_barrier")
        while issued < NCH and issued < c + NSLOT:
            issue(issued); issued += 1
```

```python
from common import *
import common
Q0, K0, V0 = 0, 5, 10
POS = {}
def _assign():
    res = {K0+0:0, K0+1:1, K0+2:2, K0+3:3, K0+4:2, V0+0:0, V0+1:1, V0+2:3, V0+3:1, V0+4:2,
           Q0+2:0, Q0+4:0, Q0+0:1, Q0+1:2, Q0+3:3}
    used = {0:0,1:0,2:0,3:0}
    for g in sorted(res):
        r = res[g]
        POS[g] = used[r]*4 + r
        used[r] += 1
_assign()
INVPOS = [14]*16
for g, p in POS.items():
    INVPOS[p] = g
def cgrp(base, hd, d0):
    col = hd*20 + d0
    return (base + col//8, (col % 8)//4)
TILE = {
  'A': [cgrp(K0,0,0), cgrp(K0,0,8), cgrp(K0,0,4), cgrp(K0,0,12), cgrp(K0,1,0), cgrp(K0,1,8), cgrp(K0,1,4), cgrp(K0,1,12)],
  'B': [cgrp(Q0,0,0), cgrp(Q0,0,8), cgrp(Q0,0,4), cgrp(Q0,0,12), cgrp(Q0,1,0), cgrp(Q0,1,8), cgrp(Q0,1,4), cgrp(Q0,1,12)],
  'C': [cgrp(V0,0,0), cgrp(V0,0,4), cgrp(V0,0,8), cgrp(V0,0,12), cgrp(V0,0,16), cgrp(K0,0,16), cgrp(K0,1,16), cgrp(V0,0,0)],
  'D': [cgrp(V0,1,0), cgrp(V0,1,4), cgrp(V0,1,8), cgrp(V0,1,12), cgrp(V0,1,16), cgrp(Q0,0,16), cgrp(Q0,1,16), cgrp(V0,1,0)],
}
def tile_const(T):
    c = 0
    for cg, (g, h) in enumerate(TILE[T]):
        c |= (2*POS[g] + h) << (8*cg)
    return c
def check_conflicts():
    for T in TILE:
        ad = []
        for l in range(64):
            G, i = l >> 4, l & 15
            cg = 4*(G & 1) + (i & 3)
            g, h = TILE[T][cg]
            u8 = (2*POS[g] + h) ^ ((i >> 2) << 3)
            ad.append((8*(G >> 1) + (i >> 2))*256 + u8*8)
        print("K1 W tile", T, "conflicts", conflicts(ad, 8))
    for st in range(4):
        ad = []
        for l in range(64):
            r = l & 31; hh = l >> 5; f = (r >> 1) & 7
            ad.append(r*128 + (((hh ^ f) ^ (2*st)) << 4))
        print("K1 x step", st, "conflicts", conflicts(ad, 16))

NCH = 10
SLOT = 32768
NSLOT = 4

def gen_k1(A, name="k1_kernel"):
    L = lambda x: "%s_%s" % (name, x)
    A.l.append(kernel_header(name))
    A("s_cmp_ge_u32 s2, 256")
    A("s_cbranch_scc1 %s" % L("end"))
    A("""
    s_load_dwordx4 s[4:7], s[0:1], %d
    s_load_dwordx2 s[8:9], s[0:1], %d
    s_load_dwordx2 s[10:11], s[0:1], %d
    v_lshrrev_b32 v1, 6, v0
    v_and_b32 v0, 63, v0
    s_and_b32 s3, s2, 7
    v_readfirstlane_b32 s12, v1
    s_lshr_b32 s15, s2, 3
    s_and_b32 s13, s3, 3
    s_lshl_b32 s13, s13, 2
    s_and_b32 s24, s15, 3
    s_add_u32 s13, s13, s24
    s_lshr_b32 s14, s3, 2
    s_lshl_b32 s14, s14, 3
    s_lshr_b32 s24, s15, 2
    s_add_u32 s14, s14, s24
    """ % (KA_X, KA_GW, KA_WS))
    stamp(A, 0)
    A("s_cmp_ge_u32 s12, 4")
    A("s_cbranch_scc1 %s" % L("loader"))
    XA = 2
    WA = 10
    ACC = 64
    FR = 128
    A("""
    s_and_b32 s24, s12, 1
    s_lshr_b32 s25, s12, 1
    v_and_b32 v14, 31, v0
    v_lshrrev_b32 v15, 5, v0
    v_lshrrev_b32 v16, 1, v14
    v_and_b32 v16, 7, v16
    v_xor_b32 v16, v15, v16
    s_lshl_b32 s26, s24, 13
    v_lshlrev_b32 v17, 7, v14
    v_add_u32 v17, s26, v17
    """)
    for st in range(4):
        A("v_xor_b32 v18, %d, v16" % (2*st))
        A("v_lshl_add_u32 %s, v18, 4, v17" % v(XA+st))
        A("v_add_u32 %s, 0x10000, %s" % (v(XA+4+st), v(XA+st)))
    A("""
    v_lshrrev_b32 v18, 4, v0
    v_and_b32 v19, 15, v0
    v_and_b32 v20, 1, v18
    v_lshlrev_b32 v20, 2, v20
    v_and_b32 v21, 3, v19
    v_add_u32 v20, v20, v21
    v_lshlrev_b32 v20, 3, v20
    v_lshrrev_b32 v21, 2, v19
    v_lshrrev_b32 v22, 1, v18
    v_lshl_add_u32 v22, v22, 3, v21
    v_lshlrev_b32 v22, 8, v22
    v_add_u32 v22, 16384, v22
    v_lshlrev_b32 v21, 3, v21
    """)
    A("s_cmp_eq_u32 s25, 0")
    A("s_cbranch_scc0 %s" % L("nw1"))
    for nw, tiles in ((0, ('A', 'B')), (1, ('C', 'D'))):
        if nw == 1:
            A.label(L("nw1"))
        for ti, T in enumerate(tiles):
            c = tile_const(T)
            A("s_mov_b32 s26, 0x%08x" % (c & 0xffffffff))
            A("s_mov_b32 s27, 0x%08x" % (c >> 32))
            A("v_lshrrev_b64 v[24:25], v20, s[26:27]")
            A("v_and_b32 v24, 0xff, v24")
            A("v_xor_b32 v24, v24, v21")
            A("v_lshl_add_u32 %s, v24, 3, v22" % v(WA+ti))
            A("v_add_u32 %s, 0x10000, %s" % (v(WA+2+ti), v(WA+ti)))
        def fr(p, j, which):
            return FR + (p % 2)*32 + j*16 + which*4
        def reads(p):
            out = []
            c = p // 2
            slot = c % NSLOT
            hi = 4 if slot >= 2 else 0
            so = (slot % 2)*SLOT
            for j in range(2):
                st = (p % 2)*2 + j
                rr = []
                for t in range(2):
                    rr.append("ds_read_b128 %s, %s offset:%d" % (v(fr(p, j, t), 4), v(XA+hi+st), so + t*4096))
                for t in range(2):
                    for u in range(2):
                        rr.append("ds_read_b64_tr_b16 %s, %s offset:%d" % (v(fr(p, j, 2+t)+2*u, 2), v(WA+hi//2+t), so + st*4096 + u*1024))
                out += [rr[0], rr[2], rr[3], rr[4], rr[5], rr[1]]
            return out
        def mfmas(p):
            out = []
            for j in range(2):
                for tm in range(2):
                    for tn in range(2):
                        acc = ACC + 16*(2*tm + tn)
                        xf, wf = fr(p, j, tm), fr(p, j, 2+tn)
                        aa, bb = (wf, xf) if nw == 0 else (xf, wf)
                        cc = "0" if (p == 0 and j == 0) else v(acc, 16)
                        out.append("v_mfma_f32_32x32x16_bf16 %s, %s, %s, %s" % (v(acc, 16), v(aa, 4), v(bb, 4), cc))
            return out
        A("s_barrier")
        stamp(A, 1)
        for r in reads(0):
            A(r)
        NP = 2*NCH
        for p in range(NP):
            A("s_waitcnt lgkmcnt(0)")
            m = mfmas(p)
            rd = reads(p+1) if p+1 < NP else []
            A(m[0]); A(m[1])
            if p % 2 == 1 and p+1 < NP:
                A("s_barrier")
            k = 0
            for mi in range(2, 8):
                for _ in range(3):
                    if k < len(rd) and mi <= 5:
                        A(rd[k]); k += 1
                A(m[mi])
        A("s_nop 15")
        stamp(A, 2)
        A("""
        s_lshl_b32 s28, s13, 2
        s_lshl_b32 s29, s24, 1
        s_add_u32 s28, s28, s29
        s_lshl_b32 s30, s14, 1
        """)
        P = 16
        if nw == 0:
            A("v_lshlrev_b32 v2, 4, v0")
            A("s_mov_b32 s36, %s" % f32(QSCALE))
            for tm in range(2):
                A("s_add_u32 s31, s28, %d" % tm)
                A("""
                s_lshr_b32 s32, s31, 3
                s_mul_i32 s32, s32, %d
                s_and_b32 s33, s31, 7
                s_lshl_b32 s33, s33, 10
                s_add_u32 s32, s32, s33
                s_lshl_b32 s34, s31, 10
                """ % CHUNK)
                for hd in range(2):
                    accK = ACC + 16*(2*tm + 0) + 8*hd
                    accQ = ACC + 16*(2*tm + 1) + 8*hd
                    A("s_add_u32 s35, s30, %d" % hd)
                    A("s_mul_i32 s37, s35, %d" % HEADKV)
                    A("s_add_u32 s37, s37, s32")
                    A("v_add_u32 v3, s37, v2")
                    for q in range(4):
                        A("v_cvt_pk_bf16_f32 %s, %s, %s" % (v(P+q), v(accK+2*q), v(accK+2*q+1)))
                    A("global_store_dwordx4 v3, %s, s[10:11]" % v(P, 4))
                    A("s_lshl_b32 s37, s35, 16")
                    A("s_add_u32 s37, s37, s34")
                    A("s_add_u32 s37, s37, 0x%x" % WS_QLO)
                    A("v_add_u32 v4, s37, v2")
                    for q in range(8):
                        A("v_mul_f32 %s, s36, %s" % (v(accQ+q), v(accQ+q)))
                    for q in range(4):
                        A("v_cvt_pk_bf16_f32 %s, %s, %s" % (v(P+4+q), v(accQ+2*q), v(accQ+2*q+1)))
                    A("global_store_dwordx4 v4, %s, s[10:11]" % v(P+4, 4))
                    A("s_nop 1")
        else:
            A("""
            v_cmp_gt_u32 vcc, 20, v14
            v_and_b32 v5, 30, v14
            v_cmp_eq_u32 s[40:41], 28, v5
            s_or_b64 s[42:43], vcc, s[40:41]
            v_subrev_u32 v5, 8, v14
            v_cndmask_b32 v5, v14, v5, s[40:41]
            v_lshlrev_b32 v5, 4, v5
            v_mul_u32_u24 v6, 352, v15
            v_add_u32 v5, v5, v6
            v_subrev_u32 v7, 20, v14
            v_cmp_gt_u32 s[44:45], 8, v7
            v_lshrrev_b32 v8, 2, v7
            v_and_b32 v7, 3, v7
            v_lshlrev_b32 v7, 6, v7
            v_lshl_add_u32 v7, v15, 3, v7
            v_mov_b32 v9, 0x3f803f80
            v_cmp_eq_u32 vcc, 29, v14
            v_mov_b32 v11, 0
            s_nop 0
            v_cndmask_b32 v9, v9, v11, vcc
            v_mov_b32 v10, 1.0
            v_mov_b32 v11, %s
            v_cndmask_b32 v10, v10, v11, s[44:45]
            s_mov_b64 s[46:47], exec
            """ % f32(QSCALE))
            for tm in range(2):
                A("s_add_u32 s31, s28, %d" % tm)
                A("""
                s_lshr_b32 s32, s31, 3
                s_mul_i32 s32, s32, %d
                s_and_b32 s33, s31, 7
                s_mul_i32 s34, s33, %d
                s_add_u32 s34, s34, s32
                s_add_u32 s34, s34, %d
                s_lshl_b32 s35, s33, 8
                s_add_u32 s35, s35, s32
                s_add_u32 s35, s35, %d
                s_lshl_b32 s38, s31, 8
                s_add_u32 s38, s38, 0x%x
                """ % (CHUNK, VT, OFF_V, OFF_KHI, WS_QHI))
                for tn in range(2):
                    acc = ACC + 16*(2*tm + tn)
                    if tn == 1:
                        for q in range(16):
                            A("v_mul_f32 %s, v10, %s" % (v(acc+q), v(acc+q)))
                    for q in range(8):
                        A("v_cvt_pk_bf16_f32 %s, %s, %s" % (v(P+q), v(acc+2*q), v(acc+2*q+1)))
                    A("v_add_u32 v12, s30, v8")
                    if tn == 0:
                        A("s_mov_b32 s37, %d" % HEADKV)
                        A("v_mul_lo_u32 v12, v12, s37")
                        A("v_add3_u32 v12, v12, s35, v7")
                    else:
                        A("v_lshlrev_b32 v12, 14, v12")
                        A("v_add3_u32 v12, v12, s38, v7")
                    A("s_mov_b64 exec, s[44:45]")
                    for q4 in range(4):
                        A("global_store_dwordx2 v12, %s, s[10:11] offset:%d" % (v(P+2*q4, 2), 16*q4))
                    A("s_mov_b64 exec, s[46:47]")
                    A("s_add_u32 s37, s30, %d" % tn)
                    A("s_mul_i32 s37, s37, %d" % HEADKV)
                    A("s_add_u32 s37, s37, s34")
                    A("v_add_u32 v13, s37, v5")
                    A("s_nop 0")
                    for q in range(8):
                        A("v_cndmask_b32 %s, %s, v9, s[40:41]" % (v(P+8+q), v(P+q)))
                    A("s_mov_b64 exec, s[42:43]")
                    A("global_store_dwordx4 v13, %s, s[10:11]" % v(P+8, 4))
                    A("global_store_dwordx4 v13, %s, s[10:11] offset:704" % v(P+12, 4))
                    A("s_mov_b64 exec, s[46:47]")
                    A("s_nop 1")
        if common.STAMPS:
            A("s_waitcnt vmcnt(0)")
        stamp(A, 3)
        stamp_flush(A, 0, 4)
        A("s_endpgm")
    A.label(L("loader"))
    A("""
    s_sub_u32 s12, s12, 4
    s_waitcnt lgkmcnt(0)
    s_mov_b32 s16, s4
    s_mov_b32 s17, s5
    s_mov_b32 s18, %d
    s_mov_b32 s19, 0x20000
    s_mov_b32 s20, s6
    s_mov_b32 s21, s7
    s_mov_b32 s22, %d
    s_mov_b32 s23, 0x20000
    """ % (S_*D_*2, D_*3*D_*2))
    A("""
    s_lshl_b32 s24, s2, 3
    s_lshl_b32 s25, s12, 1
    s_add_u32 s24, s24, s25
    s_mul_i32 s25, s24, 1280
    v_lshlrev_b32 v10, 4, v0
    v_lshlrev_b32 v11, 2, v0
    v_add_u32 v12, s25, v10
    v_add_u32 v13, s25, v11
    global_load_dwordx4 v[16:19], v12, s[4:5]
    global_load_dword v20, v13, s[4:5] offset:1024
    global_load_dwordx4 v[24:27], v12, s[4:5] offset:1280
    global_load_dword v28, v13, s[4:5] offset:2304
    global_load_dwordx4 v[32:35], v10, s[8:9]
    global_load_dword v36, v11, s[8:9] offset:1024
    """)
    A("""
    v_lshrrev_b32 v14, 3, v0
    v_mul_u32_u24 v14, 1280, v14
    v_lshrrev_b32 v15, 4, v0
    v_and_b32 v21, 7, v0
    """)
    for j in range(4):
        A("v_add_u32 v22, %d, v15" % (4*j))
        A("v_and_b32 v22, 7, v22")
        A("v_xor_b32 v22, v21, v22")
        A("v_lshl_add_u32 %s, v22, 4, v14" % v(2+j))
        if j:
            A("v_add_u32 %s, %d, %s" % (v(2+j), j*(10240-1024), v(2+j)))
    inv = 0
    for p, g in enumerate(INVPOS):
        inv |= g << (4*p)
    A("""
    v_and_b32 v21, 15, v0
    v_lshlrev_b32 v22, 2, v15
    v_xor_b32 v21, v21, v22
    v_lshlrev_b32 v21, 2, v21
    s_mov_b32 s26, 0x%08x
    s_mov_b32 s27, 0x%08x
    v_lshrrev_b64 v[22:23], v21, s[26:27]
    v_and_b32 v22, 15, v22
    v_mul_u32_u24 v23, 52, v22
    v_lshrrev_b32 v23, 8, v23
    v_mul_u32_u24 v21, 5, v23
    v_sub_u32 v22, v22, v21
    v_lshlrev_b32 v22, 4, v22
    v_mul_u32_u24 v23, 1280, v23
    v_add_u32 v22, v22, v23
    v_mul_u32_u24 v23, 3840, v15
    v_add_u32 v6, v22, v23
    """ % (inv & 0xffffffff, inv >> 32))
    for j in range(1, 4):
        A("v_add_u32 %s, %d, v6" % (v(6+j), j*(4*3840-1024)))
    A("""
    s_lshl_b32 s30, s13, 7
    s_lshl_b32 s26, s12, 5
    s_add_u32 s30, s30, s26
    s_mul_i32 s30, s30, 1280
    s_mul_i32 s31, s12, %d
    s_mul_i32 s26, s14, 80
    s_add_u32 s31, s31, s26
    s_lshl_b32 s32, s12, 12
    """ % (16*3840))
    def issue(c):
        slot = c % NSLOT
        A("s_add_u32 m0, s32, %d" % (slot*SLOT))
        A("s_nop 0")
        for j in range(4):
            A("buffer_load_dwordx4 %s, s[16:19], s30 offen offset:%d lds" % (v(2+j), 1024*j))
        A("s_add_u32 m0, s32, %d" % (slot*SLOT + 16384))
        A("s_add_u32 s30, s30, 128")
        for j in range(4):
            A("buffer_load_dwordx4 %s, s[20:23], s31 offen offset:%d lds" % (v(6+j), 1024*j))
        A("s_add_u32 s31, s31, %d" % (64*3840))
    loader_loop(A, issue, NCH, NSLOT, 8)
    def unpack(dst, src16, src4):
        for q in range(4):
            A("v_lshlrev_b32 %s, 16, %s" % (v(dst+2*q), v(src16+q)))
            A("v_and_b32 %s, 0xffff0000, %s" % (v(dst+2*q+1), v(src16+q)))
        A("v_lshlrev_b32 %s, 16, %s" % (v(dst+8), v(src4)))
        A("v_and_b32 %s, 0xffff0000, %s" % (v(dst+9), v(src4)))
    unpack(40, 16, 20); unpack(50, 24, 28); unpack(60, 32, 36)
    for r in range(2):
        b = 40 + 10*r
        A("v_add_f32 %s, %s, %s" % (v(70+r), v(b), v(b+1)))
        A("v_mul_f32 %s, %s, %s" % (v(72+r), v(b), v(60)))
        for q in range(2, 10):
            A("v_add_f32 %s, %s, %s" % (v(70+r), v(70+r), v(b+q)))
        for q in range(1, 10):
            A("v_fmac_f32 %s, %s, %s" % (v(72+r), v(b+q), v(60+q)))
    wave_reduce_add(A, [70, 71, 72, 73], [74, 75, 76, 77])
    A("s_mov_b32 s26, %s" % f32(1.0/640))
    for r in range(2):
        b = 40 + 10*r
        A("v_mul_f32 %s, s26, %s" % (v(70+r), v(70+r)))
        for q in range(10):
            A("v_sub_f32 %s, %s, %s" % (v(b+q), v(b+q), v(70+r)))
        A("v_mul_f32 %s, %s, %s" % (v(74+r), v(b), v(b)))
        for q in range(1, 10):
            A("v_fmac_f32 %s, %s, %s" % (v(74+r), v(b+q), v(b+q)))
    wave_reduce_add(A, [74, 75], [76, 77])
    A("s_mov_b32 s27, %s" % f32(1e-5))
    A("s_mov_b32 s28, %s" % f32(-1.4426950408889634))
    for r in range(2):
        b = 40 + 10*r
        A("v_mov_b32 v78, s27")
        A("v_fmac_f32 v78, s26, %s" % v(74+r))
        A("v_rsq_f32 v78, v78")
        A("v_mul_f32 %s, s28, %s" % (v(72+r), v(72+r)))
        A("v_exp_f32 %s, %s" % (v(72+r), v(72+r)))
        for q in range(10):
            A("v_mul_f32 %s, %s, v78" % (v(b+q), v(b+q)))
        A("v_add_f32 %s, 1.0, %s" % (v(72+r), v(72+r)))
        A("v_rcp_f32 %s, %s" % (v(72+r), v(72+r)))
        for q in range(5):
            A("v_cvt_pk_bf16_f32 %s, %s, %s" % (v(80+8*r+q), v(b+2*q), v(b+2*q+1)))
    A("s_add_u32 s25, s25, 0x%x" % WS_Y)
    A("v_add_u32 v12, s25, v10")
    A("v_add_u32 v13, s25, v11")
    A("global_store_dwordx4 v12, v[80:83], s[10:11]")
    A("global_store_dword v13, v84, s[10:11] offset:1024")
    A("global_store_dwordx4 v12, v[88:91], s[10:11] offset:1280")
    A("global_store_dword v13, v92, s[10:11] offset:2304")
    A("s_lshl_b32 s24, s24, 2")
    A("s_add_u32 s24, s24, 0x%x" % WS_G)
    A("v_mov_b32 v14, s24")
    A("v_cmp_eq_u32 vcc, 0, v0")
    A("s_and_saveexec_b64 s[40:41], vcc")
    A("global_store_dwordx2 v14, v[72:73], s[10:11]")
    A.label(L("end"))
    A("s_endpgm")
    return dict(name=name, vgpr=192, sgpr=102, grid=256, block=512, lds=NSLOT*SLOT)

if __name__ == "__main__":
    check_conflicts()
```

```python
from common import *
import common
LDS_FLAG = 3*CHUNK
def dsel(n): return n if n <= 20 else 21
def check_conflicts():
    for tile in range(2):
        for m2 in range(2):
            ad = [OFF_V + tile*VT + m2*2*VB + (l >> 5)*VB + dsel(l & 31)*16 for l in range(64)]
            print("attn V", tile, m2, conflicts(ad, 16))

QLO = (8, 16); QHI = (12, 20)
KLO, KHI, VF0, VF1, PP = 24, 28, 32, 36, 40
OO = (48, 64)
S0, S1 = 80, 96
T0 = 112
AKLO, AKHI, AV0, AV1 = 2, 3, 4, 5
OPT = {}

def mf(d, a_, b_, c):
    return "v_mfma_f32_32x32x16_bf16 %s, %s, %s, %s" % (v(d, 16), v(a_, 4), v(b_, 4), c if isinstance(c, str) else v(c, 16))

def attn_body(A, L):
    A("""
    v_lshrrev_b32 v1, 6, v0
    v_and_b32 v0, 63, v0
    s_and_b32 s13, s2, 7
    v_readfirstlane_b32 s12, v1
    s_lshr_b32 s14, s2, 3
    s_and_b32 s14, s14, 3
    s_lshl_b32 s14, s14, 3
    s_add_u32 s13, s13, s14
    s_lshr_b32 s14, s2, 5
    v_lshlrev_b32 v1, 4, v0
    """)
    A("""
    s_and_b32 s20, s12, 3
    s_lshr_b32 s21, s12, 2
    s_lshl_b32 s15, s14, 3
    s_lshl_b32 s22, s20, 1
    s_add_u32 s15, s15, s22
    s_lshl_b32 s24, s12, 10
    s_add_u32 s25, s24, 8192
    s_add_u32 s26, s24, 16384
    s_cmp_lt_u32 s12, 5
    s_cselect_b32 s26, s26, s25
    s_mul_i32 s27, s13, %d
    s_waitcnt lgkmcnt(0)
    s_add_u32 s16, s10, s27
    s_addc_u32 s17, s11, 0
    s_mov_b32 s18, %d
    s_mov_b32 s19, 0x20000
    """ % (HEADKV, HEADKV))
    def dma(goff, loff):
        for t, sj in enumerate(("s24", "s25", "s26")):
            A("s_add_u32 m0, %s, %s" % (sj, loff))
            A("s_add_u32 s28, %s, %s" % (sj, goff))
            A("buffer_load_dwordx4 v1, s[16:19], s28 offen lds")
    A("""
    s_lshl_b32 s27, s13, 16
    s_lshl_b32 s28, s15, 10
    s_add_u32 s27, s27, s28
    s_add_u32 s27, s27, 0x%x
    v_add_u32 v6, s27, v1
    global_load_dwordx4 %s, v6, s[10:11]
    global_load_dwordx4 %s, v6, s[10:11] offset:1024
    s_lshl_b32 s27, s13, 14
    s_lshl_b32 s28, s15, 8
    s_add_u32 s27, s27, s28
    s_add_u32 s27, s27, 0x%x
    v_and_b32 v7, 31, v0
    v_lshl_add_u32 v6, v7, 1, s27
    """ % (WS_QLO, v(QLO[0], 4), v(QLO[1], 4), WS_QHI))
    for b in range(2):
        for d in range(4):
            A("global_load_ushort %s, v6, s[10:11] offset:%d" % (v(T0+4*b+d), 256*b + 64*d))
    A("s_mov_b32 s35, 0")
    A("v_mov_b32 v7, 0")
    A("v_mov_b32 v6, %d" % LDS_FLAG)
    A("ds_write_b32 v6, v7")
    A.label(L("restart"))
    dma("0", "0")
    dma("%d" % CHUNK, "%d" % CHUNK)
    def addrs(kh_reg):
        A("""
        s_lshl_b32 s29, %s, 12
        v_add_u32 v2, s29, v1
        s_lshl_b32 s29, %s, 10
        s_add_u32 s29, s29, %d
        v_and_b32 v6, 15, v0
        v_lshrrev_b32 v3, 2, v6
        v_lshlrev_b32 v3, 6, v3
        v_bfe_u32 v6, v0, 4, 1
        v_lshl_add_u32 v3, v6, 5, v3
        v_and_b32 v6, 3, v0
        v_lshl_add_u32 v3, v6, 3, v3
        v_add_u32 v3, s29, v3
        s_mul_i32 s29, %s, %d
        s_add_u32 s29, s29, %d
        v_and_b32 v7, 31, v0
        v_min_u32 v4, 21, v7
        v_lshrrev_b32 v5, 5, v0
        v_lshlrev_b32 v4, 4, v4
        v_mul_u32_u24 v5, %d, v5
        v_add3_u32 v4, v4, v5, s29
        v_mov_b32 v5, v4
        """ % (kh_reg, kh_reg, OFF_KHI, kh_reg, 4*VT, OFF_V, VB))
    A("s_mov_b32 s36, 0")
    addrs("s36")
    A("v_mov_b32 %s, 0x3f803f80" % v(KHI+2))
    A("v_mov_b32 %s, 0x00003f80" % v(KHI+3))
    for b in range(2):
        for r in range(16):
            A("v_mov_b32 %s, 0" % v(OO[b]+r))
    for r in range(4, 8):
        A("v_mov_b32 %s, 0" % v(PP+r))
    A("""
    s_mov_b32 s30, 0
    s_mov_b32 s31, %d
    s_mov_b32 s32, %d
    s_mov_b32 s33, 0
    s_mov_b32 s38, 0x%x
    s_mov_b32 s39, %d
    """ % (2*CHUNK, 2*CHUNK, (-2*CHUNK) & 0xffffffff, CHUNK))
    A("s_cmp_lg_u32 s35, 0")
    A("s_cbranch_scc1 %s" % L("second"))
    A("s_waitcnt vmcnt(6)")
    A("v_cmp_gt_u32 vcc, 32, v0")
    for b in range(2):
        A("v_lshl_or_b32 %s, %s, 16, %s" % (v(QHI[b]), v(T0+4*b+1), v(T0+4*b)))
        A("v_lshl_or_b32 %s, %s, 16, %s" % (v(QHI[b]+1), v(T0+4*b+3), v(T0+4*b+2)))
        A("v_cndmask_b32 %s, 0, %s, vcc" % (v(QHI[b]), v(QHI[b])))
        A("v_cndmask_b32 %s, 0, %s, vcc" % (v(QHI[b]+1), v(QHI[b]+1)))
        A("v_mov_b32 %s, 0" % v(QHI[b]+2))
        A("v_mov_b32 %s, 0" % v(QHI[b]+3))
    A.label(L("second"))
    A("s_waitcnt vmcnt(3) lgkmcnt(0)")
    A("s_barrier")
    def rowmax(dst, src):
        A("v_max3_f32 %s, %s, %s, %s" % (v(dst), v(src), v(src+1), v(src+2)))
        for q in range(3, 15, 2):
            A("v_max3_f32 %s, %s, %s, %s" % (v(dst), v(dst), v(src+q), v(src+q+1)))
        A("v_max_f32 %s, %s, %s" % (v(dst), v(dst), v(src+15)))
    def set_c(m, b):
        q2, q3 = QHI[b]+2, QHI[b]+3
        t1, t2, t3, t4 = T0+8, T0+9, T0+10, T0+11
        A("""
        v_mov_b32 v{t1}, v{m}
        s_nop 1
        v_permlane32_swap_b32 v{m}, v{t1}
        s_nop 0
        v_max_f32 v{m}, v{m}, v{t1}
        v_sub_f32 v{m}, 0, v{m}
        v_cvt_pk_bf16_f32 v{t1}, v{m}, v{m}
        v_lshlrev_b32 v{t1}, 16, v{t1}
        v_sub_f32 v{t2}, v{m}, v{t1}
        v_cvt_pk_bf16_f32 v{t3}, v{t2}, v{t2}
        v_lshlrev_b32 v{t3}, 16, v{t3}
        v_sub_f32 v{t2}, v{t2}, v{t3}
        v_cmp_gt_u32 vcc, 32, v0
        v_cvt_pk_bf16_f32 v{q2}, v{t1}, v{t3}
        v_mov_b32 v{t4}, 0
        v_cvt_pk_bf16_f32 v{q3}, v{t2}, v{t4}
        v_cndmask_b32 v{q2}, 0, v{q2}, vcc
        v_cndmask_b32 v{q3}, 0, v{q3}, vcc
        """.format(m=m, t1=t1, t2=t2, t3=t3, t4=t4, q2=q2, q3=q3))
    A("s_cmp_lg_u32 s35, 0")
    A("s_cbranch_scc1 %s" % L("havec"))
    A("ds_read_b128 %s, v2" % v(KLO, 4))
    A("ds_read_b64_tr_b16 %s, v3" % v(KHI, 2))
    A("s_waitcnt lgkmcnt(0)")
    A(mf(S0, KLO, QLO[0], "0")); A(mf(S1, KLO, QLO[1], "0"))
    A(mf(S0, KHI, QHI[0], S0)); A(mf(S1, KHI, QHI[1], S1))
    A("s_nop 15")
    rowmax(T0, S0); rowmax(T0+1, S1)
    set_c(T0, 0); set_c(T0+1, 1)
    A.label(L("havec"))
    addrs("s21")
    A("ds_read_b128 %s, v2" % v(KLO, 4))
    A("ds_read_b64_tr_b16 %s, v3" % v(KHI, 2))
    A("ds_read_b128 %s, v5 offset:%d" % (v(VF1, 4), 2*VB))
    A("ds_read_b128 %s, v4" % v(VF0, 4))
    A("s_waitcnt lgkmcnt(0)")
    A(mf(S0, KLO, QLO[0], "0"))
    A(mf(S0, KHI, QHI[0], S0))
    A("s_nop 7")
    A("s_nop 3")
    if OPT.get("prio"):
        lab = A.new("pr")
        A("s_cmp_ge_u32 s12, 4")
        A("s_cbranch_scc0 %s" % lab)
        A("s_setprio 1")
        A.label(lab)
    stamp(A, 1)
    A(".p2align 6")
    A.label(L("loop"))
    def E(S, q):
        for r in range(4):
            A("v_exp_f32 %s, %s" % (v(S+4*q+r), v(S+4*q+r)))
        A("v_cvt_pk_bf16_f32 %s, %s, %s" % (v(PP+2*q), v(S+4*q), v(S+4*q+1)))
        A("v_cvt_pk_bf16_f32 %s, %s, %s" % (v(PP+2*q+1), v(S+4*q+2), v(S+4*q+3)))
    def RD(x):
        if not OPT.get("nolds"): A(x)
    def WT(x):
        if not (OPT.get("nolds") or OPT.get("nowait")): A(x)
    for t in range(4):
        if t == 3:
            if not OPT.get("nobar"):
                A("s_waitcnt vmcnt(0)")
                A("s_barrier")
            if not OPT.get("nodma"):
                dma("s31", "s32")
            A("s_add_u32 s31, s31, %d" % CHUNK)
            A("s_add_u32 s32, s32, %d" % CHUNK)
            A("s_cmp_eq_u32 s32, %d" % (3*CHUNK))
            A("s_cselect_b32 s32, 0, s32")
            A("s_add_u32 s33, s33, 1")
            A("s_cmp_eq_u32 s33, 3")
            A("s_cselect_b32 s33, 0, s33")
            A("s_cselect_b32 s34, s38, s39")
            A("v_add_u32 v2, s34, v2")
            A("v_add_u32 v3, s34, v3")
        kt = (t + 1) % 4
        A(mf(S1, KLO, QLO[1], "0"))
        RD("ds_read_b128 %s, v2 offset:%d" % (v(KLO, 4), kt*1024))
        E(S0, 0)
        A(mf(S1, KHI, QHI[1], S1))
        RD("ds_read_b64_tr_b16 %s, v3 offset:%d" % (v(KHI, 2), kt*256))
        E(S0, 1)
        A(mf(OO[1], VF1, PP+4, OO[1]))
        RD("ds_read_b128 %s, v5 offset:%d" % (v(VF1, 4), t*VT + 2*VB))
        if t == 3:
            A("v_add_u32 v5, s34, v5")
        E(S0, 2)
        WT("s_waitcnt lgkmcnt(3)")
        A(mf(OO[0], VF0, PP, OO[0]))
        E(S0, 3)
        WT("s_waitcnt lgkmcnt(0)")
        A(mf(S0, KLO, QLO[0], "0"))
        E(S1, 0)
        A(mf(S0, KHI, QHI[0], S0))
        E(S1, 1)
        A(mf(OO[0], VF1, PP+4, OO[0]))
        E(S1, 2)
        A(mf(OO[1], VF0, PP, OO[1]))
        if t == 3:
            A("v_add_u32 v4, s34, v4")
        RD("ds_read_b128 %s, v4 offset:%d" % (v(VF0, 4), kt*VT))
        E(S1, 3)
    A("s_add_u32 s30, s30, 1")
    A("s_cmp_lt_u32 s30, 8")
    A("s_cbranch_scc1 %s" % L("loop"))
    A(mf(OO[1], VF1, PP+4, OO[1]))
    stamp(A, 2)
    A("s_waitcnt vmcnt(0) lgkmcnt(0)")
    A("s_barrier")
    A("""
    s_lshl_b32 s27, s12, 12
    v_add_u32 v6, s27, v1
    s_xor_b32 s27, s12, 4
    s_lshl_b32 s27, s27, 12
    v_add_u32 v7, s27, v1
    s_cmp_eq_u32 s21, 0
    s_nop 7
    s_cbranch_scc1 %s
    """ % L("give1"))
    for give, keep, lab in ((0, 1, None), (1, 0, "give1")):
        if lab: A.label(L(lab))
        for q in range(3):
            A("ds_write_b128 v6, %s offset:%d" % (v(OO[give]+4*q, 4), 1024*q))
        A("s_waitcnt lgkmcnt(0)")
        A("s_barrier")
        for q in range(3):
            A("ds_read_b128 %s, v7 offset:%d" % (v(S0+4*q, 4), 1024*q))
        A("s_waitcnt lgkmcnt(0)")
        for r in range(12):
            A("v_add_f32 %s, %s, %s" % (v(S0+r), v(S0+r), v(OO[keep]+r)))
        if lab is None:
            A("s_branch %s" % L("fin"))
    A.label(L("fin"))
    OF = S0
    A("""
    s_add_u32 s27, s15, s21
    s_lshl_b32 s27, s27, 5
    v_and_b32 v7, 31, v0
    v_add_u32 v6, s27, v7
    v_mul_u32_u24 v6, 1280, v6
    s_mul_i32 s27, s13, 40
    s_add_u32 s27, s27, 0x%x
    v_lshrrev_b32 v7, 5, v0
    v_lshlrev_b32 v7, 3, v7
    v_add3_u32 v6, v6, v7, s27
    v_mov_b32 v%d, %s
    v_mov_b32 v%d, %s
    s_nop 1
    v_permlane32_swap_b32 v%d, v%d
    s_nop 0
    v_rcp_f32 v%d, v%d
    """ % (WS_O, T0, v(OF+8), T0+1, v(OF+8), T0, T0+1, T0+2, T0+1))
    A("v_add_f32 %s, abs(%s), abs(%s)" % (v(T0+3), v(OF), v(OF+1)))
    for r in range(2, 12):
        A("v_add_f32 %s, %s, abs(%s)" % (v(T0+3), v(T0+3), v(OF+r)))
    for r in range(12):
        A("v_mul_f32 %s, %s, %s" % (v(OF+r), v(T0+2), v(OF+r)))
    for q in range(6):
        A("v_cvt_pk_bf16_f32 %s, %s, %s" % (v(PP+q), v(OF+2*q), v(OF+2*q+1)))
    A("global_store_dwordx2 v6, %s, s[10:11]" % v(PP, 2))
    A("global_store_dwordx2 v6, %s, s[10:11] offset:16" % v(PP+2, 2))
    A("v_cmp_gt_u32 vcc, 32, v0")
    A("s_and_saveexec_b64 s[40:41], vcc")
    A("global_store_dwordx2 v6, %s, s[10:11] offset:32" % v(PP+4, 2))
    A("s_mov_b64 exec, s[40:41]")
    A("s_cmp_lg_u32 s35, 0")
    A("s_cbranch_scc1 %s" % L("done"))
    A("""
    v_mov_b32 v7, 0x7f800000
    v_cmp_nlt_f32 vcc, %s, v7
    v_mov_b32 v6, %d
    v_mov_b32 v7, 1
    s_and_saveexec_b64 s[40:41], vcc
    s_cbranch_execz %s
    ds_write_b32 v6, v7
    """ % (v(T0+3), LDS_FLAG, L("noflag")))
    A.label(L("noflag"))
    A("""
    s_mov_b64 exec, s[40:41]
    s_waitcnt lgkmcnt(0)
    s_barrier
    ds_read_b32 v7, v6
    s_waitcnt lgkmcnt(0)
    v_readfirstlane_b32 s36, v7
    s_nop 3
    s_cmp_eq_u32 s36, 0
    s_cbranch_scc1 %s
    """ % L("done"))
    A("s_mov_b32 s35, 1")
    for b in range(2):
        A("v_mov_b32 %s, 0" % v(QHI[b]+2))
        A("v_mov_b32 %s, 0" % v(QHI[b]+3))
        A("v_mov_b32 %s, 0xff800000" % v(T0+b))
    A("s_mov_b32 s30, 0")
    A("s_mov_b32 s31, 0")
    A("s_waitcnt vmcnt(0)")
    A.label(L("fb_chunk"))
    A("s_barrier")
    dma("s31", "0")
    A("s_waitcnt vmcnt(0)")
    A("s_barrier")
    A("s_mov_b32 s36, 0")
    addrs("s36")
    A("s_mov_b32 s37, 0")
    A.label(L("fb_tile"))
    A("ds_read_b128 %s, v2" % v(KLO, 4))
    A("ds_read_b64_tr_b16 %s, v3" % v(KHI, 2))
    A("v_add_u32 v2, 1024, v2")
    A("v_add_u32 v3, 256, v3")
    A("s_waitcnt lgkmcnt(0)")
    A(mf(S0, KLO, QLO[0], "0")); A(mf(S1, KLO, QLO[1], "0"))
    A(mf(S0, KHI, QHI[0], S0)); A(mf(S1, KHI, QHI[1], S1))
    A("s_nop 15")
    rowmax(T0+2, S0); rowmax(T0+3, S1)
    A("v_max_f32 %s, %s, %s" % (v(T0), v(T0), v(T0+2)))
    A("v_max_f32 %s, %s, %s" % (v(T0+1), v(T0+1), v(T0+3)))
    A("s_add_u32 s37, s37, 1")
    A("s_cmp_lt_u32 s37, 8")
    A("s_cbranch_scc1 %s" % L("fb_tile"))
    A("s_add_u32 s31, s31, %d" % CHUNK)
    A("s_add_u32 s30, s30, 1")
    A("s_cmp_lt_u32 s30, 8")
    A("s_cbranch_scc1 %s" % L("fb_chunk"))
    set_c(T0, 0); set_c(T0+1, 1)
    A("s_barrier")
    A("s_branch %s" % L("restart"))
    A.label(L("done"))
    stamp(A, 3)
    stamp_flush(A, 1, 4)

def gen_k2b(A, name="k2a_kernel"):
    L = lambda x: "%s_%s" % (name, x)
    A.l.append(kernel_header(name))
    A("s_cmp_ge_u32 s2, 256")
    A("s_cbranch_scc1 %s" % L("exit"))
    A("s_load_dwordx2 s[10:11], s[0:1], %d" % KA_WS)
    stamp(A, 0)
    attn_body(A, L)
    A.label(L("exit"))
    A("s_endpgm")
    return dict(name=name, vgpr=124, sgpr=102, grid=256, block=512, lds=81920)

if __name__ == "__main__":
    check_conflicts()
```

```python
from common import *
import common
SLOT = 18432
WOFF = 8192
def swap23(k): return (k & 0x33) | ((k & 4) << 1) | ((k & 8) >> 1)
def check_conflicts():
    for st in range(2):
        ad = []
        for l in range(64):
            m, g = l & 15, l >> 4
            f = (m >> 1) & 7
            ad.append(m*128 + (((4*st + g) ^ f) << 4))
        print("g64 act", st, conflicts(ad, 16))
        for u in range(2):
            for t in range(5):
                ad = []
                for l in range(64):
                    G, i = l >> 4, l & 15
                    k = 32*st + 8*G + 4*u + (i >> 2)
                    ad.append(swap23(k)*160 + t*32 + (i & 3)*8)
                c = conflicts(ad, 8)
                if c: print("g64 W conflict", st, u, t, c)

def g64_body(A, L, mode, NSLOT, kid):
    if mode == "mlp2":
        NCH, astride, aoff, asize, kaW, wsize = 24, 3072, WS_H, S_*F_*2, KA_W2, F_*D_*2
    else:
        NCH, astride, aoff, asize, kaW, wsize = 10, 1280, WS_O, S_*D_*2, KA_WO, D_*D_*2
    A("""
    s_load_dwordx2 s[4:5], s[0:1], %d
    s_load_dwordx2 s[6:7], s[0:1], %d
    s_load_dwordx2 s[10:11], s[0:1], %d
    v_lshrrev_b32 v1, 6, v0
    v_and_b32 v0, 63, v0
    s_and_b32 s3, s2, 7
    v_readfirstlane_b32 s12, v1
    s_lshr_b32 s15, s2, 3
    s_lshl_b32 s13, s3, 2
    s_and_b32 s24, s15, 3
    s_add_u32 s13, s13, s24
    s_lshr_b32 s14, s15, 2
    """ % (kaW, KA_B2 if mode == "mlp2" else KA_OUT, KA_WS))
    stamp(A, 0)
    A("s_cmp_ge_u32 s12, 4")
    A("s_cbranch_scc1 %s" % L(mode + "_loader"))
    NB = (NSLOT + 2)//3
    XA = 2
    WA = XA + 2*NB
    assert WA + NB <= 14
    ACC = 32
    EX = 52
    FR = 72
    A("""
    v_and_b32 v14, 15, v0
    v_lshrrev_b32 v15, 4, v0
    v_lshrrev_b32 v16, 1, v14
    v_xor_b32 v16, v15, v16
    s_lshl_b32 s26, s12, 11
    v_lshlrev_b32 v17, 7, v14
    v_add_u32 v17, s26, v17
    """)
    for st in range(2):
        A("v_xor_b32 v18, %d, v16" % (4*st))
        A("v_lshl_add_u32 %s, v18, 4, v17" % v(XA+st))
        for b in range(1, NB):
            A("v_add_u32 %s, %d, %s" % (v(XA+2*b+st), 3*SLOT*b, v(XA+st)))
    A("""
    v_lshrrev_b32 v18, 1, v15
    v_lshlrev_b32 v18, 4, v18
    v_and_b32 v19, 1, v15
    v_lshl_add_u32 v18, v19, 2, v18
    v_lshrrev_b32 v19, 2, v14
    v_add_u32 v18, v18, v19
    v_mul_u32_u24 v18, 160, v18
    v_and_b32 v19, 3, v14
    v_lshl_add_u32 v18, v19, 3, v18
    v_add_u32 %s, %d, v18
    """ % (v(WA), WOFF))
    for b in range(1, NB):
        A("v_add_u32 %s, %d, %s" % (v(WA+b), 3*SLOT*b, v(WA)))
    A("""
    s_lshl_b32 s26, s13, 6
    s_lshl_b32 s27, s12, 4
    s_add_u32 s26, s26, s27
    v_add_u32 v20, s26, v14
    s_mul_i32 s27, s14, 80
    v_lshl_add_u32 v21, v15, 2, s27
    v_lshlrev_b32 v22, 2, v20
    v_add_u32 v22, 0x%x, v22
    s_waitcnt lgkmcnt(0)
    global_load_dword v23, v22, s[10:11]
    """ % WS_G)
    if mode == "mlp2":
        A("v_lshlrev_b32 v24, 1, v21")
        for t in range(5):
            A("global_load_dwordx2 %s, v24, s[6:7] offset:%d" % (v(FR+2*t, 2), 32*t))
        A("s_waitcnt vmcnt(0)")
        for t in range(5):
            for q in range(2):
                A("v_lshlrev_b32 %s, 16, %s" % (v(ACC+4*t+2*q), v(FR+2*t+q)))
                A("v_and_b32 %s, 0xffff0000, %s" % (v(ACC+4*t+2*q+1), v(FR+2*t+q)))
    else:
        A("s_movk_i32 s27, 2560")
        A("v_mul_lo_u32 v24, v20, s27")
        A("v_lshl_add_u32 v24, v21, 2, v24")
        A("v_add_u32 v24, 0x%x, v24" % WS_BMIX)
        for t in range(5):
            A("global_load_dwordx4 %s, v24, s[10:11] offset:%d" % (v(EX+4*t, 4), 64*t))
    def fr(p, j, which):
        return FR + (p % 2)*48 + j*24 + which*4
    def reads(c):
        out = []
        slot = c % NSLOT; b = slot // 3; so = (slot % 3)*SLOT
        for j in range(2):
            out.append("ds_read_b128 %s, %s offset:%d" % (v(fr(c, j, 0), 4), v(XA+2*b+j), so))
            for t in range(5):
                for u in range(2):
                    out.append("ds_read_b64_tr_b16 %s, %s offset:%d" % (v(fr(c, j, 1+t)+2*u, 2), v(WA+b), so + (32*j + 8*u)*160 + t*32))
        return out
    def mfmas(c):
        out = []
        for j in range(2):
            for t in range(5):
                acc = ACC + 4*t
                cc = "0" if (mode == "oproj" and c == 0 and j == 0) else v(acc, 4)
                out.append("v_mfma_f32_16x16x32_bf16 %s, %s, %s, %s" % (v(acc, 4), v(fr(c, j, 1+t), 4), v(fr(c, j, 0), 4), cc))
        return out
    A("s_barrier")
    stamp(A, 1)
    for r in reads(0): A(r)
    for c in range(NCH):
        if c+1 < NCH:
            A("s_waitcnt lgkmcnt(0)")
            A("s_barrier")
        else:
            A("s_waitcnt lgkmcnt(0)")
        m = mfmas(c)
        rd = reads(c+1) if c+1 < NCH else []
        k = 0
        for mi in range(10):
            A(m[mi])
            for _ in range(3):
                if k < len(rd):
                    A(rd[k]); k += 1
    A("s_nop 7")
    stamp(A, 2)
    if mode == "mlp2":
        A("v_sub_f32 v23, 1.0, v23")
        A("s_movk_i32 s27, 2560")
        A("v_mul_lo_u32 v24, v20, s27")
        A("v_lshl_add_u32 v24, v21, 2, v24")
        A("v_add_u32 v24, 0x%x, v24" % WS_BMIX)
        for t in range(5):
            for r in range(4):
                A("v_mul_f32 %s, v23, %s" % (v(ACC+4*t+r), v(ACC+4*t+r)))
            A("global_store_dwordx4 v24, %s, s[10:11] offset:%d" % (v(ACC+4*t, 4), 64*t))
    else:
        A("s_waitcnt vmcnt(0)")
        A("v_mul_u32_u24 v24, 1280, v20")
        A("v_lshl_add_u32 v24, v21, 1, v24")
        for t in range(5):
            for r in range(4):
                A("v_fma_f32 %s, v23, %s, %s" % (v(ACC+4*t+r), v(ACC+4*t+r), v(EX+4*t+r)))
            A("v_cvt_pk_bf16_f32 %s, %s, %s" % (v(FR+2*t), v(ACC+4*t), v(ACC+4*t+1)))
            A("v_cvt_pk_bf16_f32 %s, %s, %s" % (v(FR+2*t+1), v(ACC+4*t+2), v(ACC+4*t+3)))
            A("global_store_dwordx2 v24, %s, s[6:7] offset:%d" % (v(FR+2*t, 2), 32*t))
    if common.STAMPS:
        A("s_waitcnt vmcnt(0)")
    stamp(A, 3)
    stamp_flush(A, kid, 4)
    A("s_branch %s" % L(mode + "_done"))
    A.label(L(mode + "_loader"))
    A("""
    s_sub_u32 s12, s12, 4
    s_waitcnt lgkmcnt(0)
    s_add_u32 s16, s10, 0x%x
    s_addc_u32 s17, s11, 0
    s_mov_b32 s18, %d
    s_mov_b32 s19, 0x20000
    s_mov_b32 s20, s4
    s_mov_b32 s21, s5
    s_mov_b32 s22, %d
    s_mov_b32 s23, 0x20000
    v_lshrrev_b32 v14, 3, v0
    s_movk_i32 s26, %d
    v_mul_lo_u32 v14, v14, s26
    v_lshrrev_b32 v15, 4, v0
    v_and_b32 v21, 7, v0
    """ % (aoff, asize, wsize, astride))
    for j in range(2):
        A("v_add_u32 v22, %d, v15" % (4*j))
        A("v_and_b32 v22, 7, v22")
        A("v_xor_b32 v22, v21, v22")
        A("v_lshl_add_u32 %s, v22, 4, v14" % v(2+j))
        if j:
            A("v_add_u32 %s, %d, %s" % (v(2+j), j*(8*astride-1024), v(2+j)))
    A("s_mov_b32 s27, 52429")
    for jj in range(3):
        A("s_add_u32 s28, s12, %d" % (4*jj))
        A("s_lshl_b32 s28, s28, 6")
        A("v_add_u32 v21, s28, v0")
        A("v_mul_lo_u32 v22, v21, s27")
        A("v_lshrrev_b32 v22, 19, v22")
        A("v_mul_u32_u24 v23, 10, v22")
        A("v_sub_u32 v21, v21, v23")
        A("v_and_b32 v23, 0x33, v22")
        A("v_and_b32 v24, 4, v22")
        A("v_lshl_or_b32 v23, v24, 1, v23")
        A("v_and_b32 v24, 8, v22")
        A("v_lshrrev_b32 v24, 1, v24")
        A("v_or_b32 v23, v23, v24")
        A("v_mul_u32_u24 v23, 1280, v23")
        A("v_lshl_add_u32 %s, v21, 4, v23" % v(6+jj))
    A("""
    s_lshl_b32 s30, s13, 6
    s_lshl_b32 s26, s12, 4
    s_add_u32 s30, s30, s26
    s_mul_i32 s30, s30, %d
    s_mul_i32 s31, s14, 160
    s_lshl_b32 s32, s12, 11
    s_lshl_b32 s33, s12, 10
    """ % astride)
    def mk_issue(nw):
        def issue(c):
            slot = c % NSLOT
            A("s_add_u32 m0, s32, %d" % (slot*SLOT))
            A("s_nop 0")
            for j in range(2):
                A("buffer_load_dwordx4 %s, s[16:19], s30 offen offset:%d lds" % (v(2+j), 1024*j))
            A("s_add_u32 s30, s30, 128")
            for jj in range(nw):
                A("s_add_u32 m0, s33, %d" % (slot*SLOT + WOFF + 4096*jj))
                A("s_nop 0")
                A("buffer_load_dwordx4 %s, s[20:23], s31 offen lds" % v(6+jj))
            A("s_add_u32 s31, s31, %d" % (64*1280))
        return issue
    A("s_cmp_lt_u32 s12, 2")
    A("s_cbranch_scc0 %s" % L(mode + "_loaderB"))
    loader_loop(A, mk_issue(3), NCH, NSLOT, 5)
    A("s_branch %s" % L(mode + "_done"))
    A.label(L(mode + "_loaderB"))
    loader_loop(A, mk_issue(2), NCH, NSLOT, 4)
    A.label(L(mode + "_done"))

def gen_g64(mode, NSLOT, kid):
    def gen(A):
        name = mode + "_kernel"
        L = lambda x: "%s_%s" % (name, x)
        A.l.append(kernel_header(name))
        A("s_cmp_ge_u32 s2, 256")
        A("s_cbranch_scc1 %s" % L("exit"))
        g64_body(A, L, mode, NSLOT, kid)
        A.label(L("exit"))
        A("s_endpgm")
        return dict(name=name, vgpr=168, sgpr=102, grid=256, block=512, lds=NSLOT*SLOT)
    return gen
if __name__ == "__main__":
    check_conflicts()
```

```python
from common import *
import common
SLOT = 28672
WOFF = 16384
NCH = 10
CMAP = [0, 2, 1, 3, 4, 6, 5, 7]
def check_conflicts():
    for t in range(3):
        ad = []
        for l in range(64):
            G, i = l >> 4, l & 15
            cg = 4*(G & 1) + (i & 3)
            ad.append((8*(G >> 1) + (i >> 2))*192 + CMAP[cg]*8 + t*64)
        print("mlp1 W tile", t, conflicts(ad, 8))

C0 = -2.0*0.7978845608028654*1.4426950408889634
C1 = C0*0.044715

def gelu_pairs(A, acc, n, tmp, sC1, vC0, sOne):
    for q in range(0, n, 4):
        for h in range(2):
            x = acc + q + 2*h; t = tmp + 2*h
            A("v_pk_mul_f32 %s, %s, %s" % (v(t, 2), v(x, 2), v(x, 2)))
        for h in range(2):
            t = tmp + 2*h
            A("v_pk_fma_f32 %s, %s, %s, %s" % (v(t, 2), v(t, 2), s(sC1, 2), v(vC0, 2)))
        for h in range(2):
            x = acc + q + 2*h; t = tmp + 2*h
            A("v_pk_mul_f32 %s, %s, %s" % (v(t, 2), v(t, 2), v(x, 2)))
        for r in range(4):
            A("v_exp_f32 %s, %s" % (v(tmp+r), v(tmp+r)))
        A("s_nop 0")
        for h in range(2):
            t = tmp + 2*h
            A("v_pk_add_f32 %s, %s, %s" % (v(t, 2), v(t, 2), s(sOne, 2)))
        for r in range(4):
            A("v_rcp_f32 %s, %s" % (v(tmp+r), v(tmp+r)))
        A("s_nop 0")
        for h in range(2):
            x = acc + q + 2*h; t = tmp + 2*h
            A("v_pk_mul_f32 %s, %s, %s" % (v(x, 2), v(x, 2), v(t, 2)))

def mlp1_body(A, L, NSLOT, kid=2, wgmap=None):
    A("""
    s_load_dwordx4 s[4:7], s[0:1], %d
    s_load_dwordx2 s[10:11], s[0:1], %d
    v_lshrrev_b32 v1, 6, v0
    v_and_b32 v0, 63, v0
    s_and_b32 s3, s2, 7
    v_readfirstlane_b32 s12, v1
    s_lshr_b32 s15, s2, 3
    s_and_b32 s13, s3, 3
    s_lshl_b32 s13, s13, 2
    s_and_b32 s24, s15, 3
    s_add_u32 s13, s13, s24
    s_lshr_b32 s14, s3, 2
    s_lshl_b32 s14, s14, 3
    s_lshr_b32 s24, s15, 2
    s_add_u32 s14, s14, s24
    """ % (KA_W1, KA_WS))
    stamp(A, 0)
    A("s_cmp_ge_u32 s12, 4")
    A("s_cbranch_scc1 %s" % L("loader"))
    NB = (NSLOT + 1)//2
    XA = 2
    WA = XA + 4*NB
    ACC = 32
    FR = 80
    TMP = 24
    A("""
    v_and_b32 v14, 31, v0
    v_lshrrev_b32 v15, 5, v0
    v_lshrrev_b32 v16, 1, v14
    v_and_b32 v16, 7, v16
    v_xor_b32 v16, v15, v16
    s_lshl_b32 s26, s12, 12
    v_lshlrev_b32 v17, 7, v14
    v_add_u32 v17, s26, v17
    """)
    for st in range(4):
        A("v_xor_b32 v18, %d, v16" % (2*st))
        A("v_lshl_add_u32 %s, v18, 4, v17" % v(XA+st))
        for b in range(1, NB):
            A("v_add_u32 %s, %d, %s" % (v(XA+4*b+st), 2*SLOT*b, v(XA+st)))
    cm = 0
    for cg, x in enumerate(CMAP): cm |= x << (4*cg)
    A("""
    v_lshrrev_b32 v18, 4, v0
    v_and_b32 v19, 15, v0
    v_and_b32 v20, 1, v18
    v_lshlrev_b32 v20, 2, v20
    v_and_b32 v21, 3, v19
    v_add_u32 v20, v20, v21
    v_lshlrev_b32 v20, 2, v20
    s_mov_b32 s26, 0x%08x
    v_lshrrev_b32 v20, v20, s26
    v_and_b32 v20, 7, v20
    v_lshrrev_b32 v21, 2, v19
    v_lshrrev_b32 v22, 1, v18
    v_lshl_add_u32 v22, v22, 3, v21
    v_mul_u32_u24 v22, 192, v22
    v_lshl_add_u32 v22, v20, 3, v22
    v_add_u32 %s, %d, v22
    """ % (cm, v(WA), WOFF))
    for b in range(1, NB):
        A("v_add_u32 %s, %d, %s" % (v(WA+b), 2*SLOT*b, v(WA)))
    A("""
    s_mul_i32 s26, s14, 192
    v_lshlrev_b32 v18, 4, v15
    v_add_u32 v18, s26, v18
    s_waitcnt lgkmcnt(0)
    """)
    for t in range(3):
        A("global_load_dwordx4 %s, v18, s[6:7] offset:%d" % (v(FR+8*t, 4), 64*t))
        A("global_load_dwordx4 %s, v18, s[6:7] offset:%d" % (v(FR+8*t+4, 4), 64*t + 32))
    A("s_waitcnt vmcnt(0)")
    for t in range(3):
        for q in range(8):
            A("v_lshlrev_b32 %s, 16, %s" % (v(ACC+16*t+2*q), v(FR+8*t+q)))
            A("v_and_b32 %s, 0xffff0000, %s" % (v(ACC+16*t+2*q+1), v(FR+8*t+q)))
    def fr(p, j, which):
        return FR + (p % 2)*32 + j*16 + which*4
    def reads(p):
        out = []
        c = p // 2; slot = c % NSLOT; b = slot // 2; so = (slot % 2)*SLOT
        for j in range(2):
            st = (p % 2)*2 + j
            out.append("ds_read_b128 %s, %s offset:%d" % (v(fr(p, j, 0), 4), v(XA+4*b+st), so))
            for t in range(3):
                for u in range(2):
                    out.append("ds_read_b64_tr_b16 %s, %s offset:%d" % (v(fr(p, j, 1+t)+2*u, 2), v(WA+b), so + (16*st + 4*u)*192 + t*64))
        return out
    def mfmas(p):
        out = []
        for j in range(2):
            for t in range(3):
                acc = ACC + 16*t
                out.append("v_mfma_f32_32x32x16_bf16 %s, %s, %s, %s" % (v(acc, 16), v(fr(p, j, 1+t), 4), v(fr(p, j, 0), 4), v(acc, 16)))
        return out
    A("s_barrier")
    stamp(A, 1)
    for r in reads(0): A(r)
    NP = 2*NCH
    for p in range(NP):
        A("s_waitcnt lgkmcnt(0)")
        m = mfmas(p)
        rd = reads(p+1) if p+1 < NP else []
        A(m[0])
        if p % 2 == 1 and p+1 < NP:
            A("s_barrier")
        k = 0
        for mi in range(1, 6):
            for _ in range(4):
                if k < len(rd) and mi <= 4:
                    A(rd[k]); k += 1
            A(m[mi])
    A("s_nop 15")
    stamp(A, 2)
    A("""
    s_mov_b32 s28, %s
    s_mov_b32 s29, %s
    s_mov_b32 s30, 1.0
    s_mov_b32 s31, 1.0
    v_mov_b32 v22, %s
    v_mov_b32 v23, %s
    s_lshl_b32 s26, s13, 7
    s_lshl_b32 s27, s12, 5
    s_add_u32 s26, s26, s27
    v_add_u32 v18, s26, v14
    s_movk_i32 s27, 3072
    v_mul_lo_u32 v18, v18, s27
    s_mul_i32 s26, s14, 192
    s_add_u32 s26, s26, 0x%x
    v_lshlrev_b32 v19, 4, v15
    v_add3_u32 v18, v18, v19, s26
    """ % (f32(C1), f32(C1), f32(C0), f32(C0), WS_H))
    for t in range(3):
        acc = ACC + 16*t
        gelu_pairs(A, acc, 16, TMP, 28, 22, 30)
        for q in range(8):
            A("v_cvt_pk_bf16_f32 %s, %s, %s" % (v(FR+8*t+q), v(acc+2*q), v(acc+2*q+1)))
        A("global_store_dwordx4 v18, %s, s[10:11] offset:%d" % (v(FR+8*t, 4), 64*t))
        A("global_store_dwordx4 v18, %s, s[10:11] offset:%d" % (v(FR+8*t+4, 4), 64*t + 32))
    if common.STAMPS:
        A("s_waitcnt vmcnt(0)")
    stamp(A, 3)
    stamp_flush(A, kid, 4)
    A("s_branch %s" % L("mlp1_done"))
    A.label(L("loader"))
    A("""
    s_sub_u32 s12, s12, 4
    s_waitcnt lgkmcnt(0)
    s_add_u32 s16, s10, 0x%x
    s_addc_u32 s17, s11, 0
    s_mov_b32 s18, %d
    s_mov_b32 s19, 0x20000
    s_mov_b32 s20, s4
    s_mov_b32 s21, s5
    s_mov_b32 s22, %d
    s_mov_b32 s23, 0x20000
    v_lshrrev_b32 v14, 3, v0
    v_mul_u32_u24 v14, 1280, v14
    v_lshrrev_b32 v15, 4, v0
    v_and_b32 v21, 7, v0
    """ % (WS_Y, S_*D_*2, D_*F_*2))
    for j in range(4):
        A("v_add_u32 v22, %d, v15" % (4*j))
        A("v_and_b32 v22, 7, v22")
        A("v_xor_b32 v22, v21, v22")
        A("v_lshl_add_u32 %s, v22, 4, v14" % v(2+j))
        if j:
            A("v_add_u32 %s, %d, %s" % (v(2+j), j*(10240-1024), v(2+j)))
    A("s_mul_i32 s26, s12, 192")
    A("s_mov_b32 s27, 43691")
    for j in range(3):
        A("s_add_u32 s28, s26, %d" % (64*j))
        A("v_add_u32 v21, s28, v0")
        A("v_mul_lo_u32 v22, v21, s27")
        A("v_lshrrev_b32 v22, 19, v22")
        A("v_mul_u32_u24 v23, 12, v22")
        A("v_sub_u32 v21, v21, v23")
        A("v_mul_u32_u24 v22, 3072, v22")
        A("v_lshl_add_u32 %s, v21, 4, v22" % v(6+j))
        if j:
            A("v_subrev_u32 %s, %d, %s" % (v(6+j), 1024*j, v(6+j)))
    A("""
    s_lshl_b32 s30, s13, 7
    s_lshl_b32 s26, s12, 5
    s_add_u32 s30, s30, s26
    s_mul_i32 s30, s30, 1280
    s_mul_i32 s31, s14, 192
    s_lshl_b32 s32, s12, 12
    s_mul_i32 s33, s12, 3072
    """)
    def issue(c):
        slot = c % NSLOT
        A("s_add_u32 m0, s32, %d" % (slot*SLOT))
        A("s_nop 0")
        for j in range(4):
            A("buffer_load_dwordx4 %s, s[16:19], s30 offen offset:%d lds" % (v(2+j), 1024*j))
        A("s_add_u32 m0, s33, %d" % (slot*SLOT + WOFF))
        A("s_add_u32 s30, s30, 128")
        for j in range(3):
            A("buffer_load_dwordx4 %s, s[20:23], s31 offen offset:%d lds" % (v(6+j), 1024*j))
        A("s_add_u32 s31, s31, %d" % (64*3072))
    loader_loop(A, issue, NCH, NSLOT, 7)
    A.label(L("mlp1_done"))

def gen_mlp1(A, name="mlp1_kernel"):
    L = lambda x: "%s_%s" % (name, x)
    A.l.append(kernel_header(name))
    A("s_cmp_ge_u32 s2, 256")
    A("s_cbranch_scc1 %s" % L("exit"))
    NSLOT = 4
    mlp1_body(A, L, NSLOT)
    A.label(L("exit"))
    A("s_endpgm")
    return dict(name=name, vgpr=144, sgpr=102, grid=256, block=512, lds=NSLOT*SLOT)
if __name__ == "__main__":
    check_conflicts()
```

```python
import common, sys
import build, k1, k2b, kmlp1, kg64
def mk(path, stamps=False):
    common.STAMPS = stamps
    return build.build([k1.gen_k1, k2b.gen_k2b, kmlp1.gen_mlp1, kg64.gen_g64("mlp2", 8, 3), kg64.gen_g64("oproj", 8, 4)], path)
mk("t_all.s")
mk("t_alls.s", True)
```

```python
import common, sys
import build, k1, k2b, kmlp1, kg64
from asmlib import *
def gen_empty(A):
    name = "empty_kernel"
    A.l.append(kernel_header(name)); A("s_endpgm")
    return dict(name=name, vgpr=8, sgpr=16, grid=256, block=64, lds=0)
gens = [k1.gen_k1, k2b.gen_k2b, kmlp1.gen_mlp1, kg64.gen_g64("mlp2", 8, 3), kg64.gen_g64("oproj", 8, 4), gen_empty]
def mk(path, order):
    A = Asm(); infos = [g(A) for g in gens]
    import build as B
    out_infos = B.build(gens, path, repeat=[infos[i] for i in order])
mk("v_e0.s", [0,1,2,3,4])
mk("v_e1.s", [0,1,2,3,4,5])
mk("v_e4.s", [0,1,2,3,4,5,5,5,5])
mk("v_pre4.s", [5,5,5,5,0,1,2,3,4])
mk("v_dup.s", [0,0,1,2,3,4])
```

```python
from common import *
import common, k2b, kmlp1, kg64
OPT = {}
def handoff(A, L, sig_idx_sreg, wait_idx_sreg, target, base="s[92:93]", wave="s90"):
    A("s_waitcnt vmcnt(0) lgkmcnt(0)")
    A("s_barrier")
    A("s_cmp_lg_u32 %s, 0" % wave)
    A("s_cbranch_scc1 %s" % L("ho_wait"))
    A("""
    s_mov_b64 exec, 1
    s_lshl_b32 s26, %s, 2
    v_mov_b32 v2, s26
    v_mov_b32 v3, 1
    global_atomic_add v2, v3, %s
    s_lshl_b32 s26, %s, 2
    v_mov_b32 v2, s26
    s_mov_b32 s28, 0
    """ % (sig_idx_sreg, base, wait_idx_sreg))
    A.label(L("ho_poll"))
    A("""
    global_load_dword v4, v2, %s sc1
    s_add_u32 s28, s28, 1
    s_waitcnt vmcnt(0)
    v_readfirstlane_b32 s27, v4
    s_cmp_ge_u32 s27, %d
    s_cbranch_scc1 %s
    s_sleep 8
    s_cmp_lt_u32 s28, 0x40000
    s_cbranch_scc1 %s
    """ % (base, target, L("ho_ok"), L("ho_poll")))
    A.label(L("ho_ok"))
    A("buffer_inv sc1")
    A("s_waitcnt vmcnt(0)")
    A("s_mov_b64 exec, -1")
    A.label(L("ho_wait"))
    A("s_barrier")

def gen_k2m(A, name="k2_kernel"):
    L = lambda x: "%s_%s" % (name, x)
    A.l.append(kernel_header(name))
    A("s_cmp_ge_u32 s2, 512")
    A("s_cbranch_scc1 %s" % L("exit"))
    A("s_cmp_ge_u32 s2, 256")
    A("s_cbranch_scc1 %s" % L("grole"))
    if OPT.get("noattn"):
        A("s_endpgm")
    A("s_load_dwordx2 s[10:11], s[0:1], %d" % KA_WS)
    stamp(A, 0)
    if OPT.get("aprio"):
        A("s_setprio %d" % OPT["aprio"])
    k2b.attn_body(A, L)
    A("s_endpgm")
    A.label(L("grole"))
    A("s_sub_u32 s2, s2, 256")
    A("s_load_dwordx2 s[92:93], s[0:1], %d" % KA_DBG)
    A("v_lshrrev_b32 v1, 6, v0")
    A("s_nop 0")
    A("v_readfirstlane_b32 s90, v1")
    LG = lambda x: L("g1_" + x)
    kmlp1.mlp1_body(A, LG, 2, kid=2, xcdrows=True, sc1=True)
    A("""
    s_and_b32 s24, s2, 7
    s_lshl_b32 s24, s24, 1
    s_lshr_b32 s25, s2, 4
    s_and_b32 s25, s25, 1
    s_add_u32 s24, s24, s25
    """)
    handoff(A, L, "s13", "s24", 16)
    A("v_mbcnt_lo_u32_b32 v0, -1, 0")
    A("v_mbcnt_hi_u32_b32 v0, -1, v0")
    A("s_lshl_b32 s24, s90, 6")
    A("v_add_u32 v0, s24, v0")
    LG2 = lambda x: L("g2_" + x)
    kg64.g64_body(A, LG2, "mlp2", 4, 3)
    A.label(L("exit"))
    A("s_endpgm")
    return dict(name=name, vgpr=128, sgpr=102, grid=512, block=512, lds=81920)
```

```python
from common import *
import common
SLOT = 18432
WOFF = 8192
def swap23(k): return (k & 0x33) | ((k & 4) << 1) | ((k & 8) >> 1)
def check_conflicts():
    for st in range(2):
        ad = []
        for l in range(64):
            m, g = l & 15, l >> 4
            f = (m >> 1) & 7
            ad.append(m*128 + (((4*st + g) ^ f) << 4))
        print("g64 act", st, conflicts(ad, 16))
        for u in range(2):
            for t in range(5):
                ad = []
                for l in range(64):
                    G, i = l >> 4, l & 15
                    k = 32*st + 8*G + 4*u + (i >> 2)
                    ad.append(swap23(k)*160 + t*32 + (i & 3)*8)
                c = conflicts(ad, 8)
                if c: print("g64 W conflict", st, u, t, c)

def g64_body(A, L, mode, NSLOT, kid):
    if mode == "mlp2":
        NCH, astride, aoff, asize, kaW, wsize = 24, 3072, WS_H, S_*F_*2, KA_W2, F_*D_*2
    else:
        NCH, astride, aoff, asize, kaW, wsize = 10, 1280, WS_O, S_*D_*2, KA_WO, D_*D_*2
    A("""
    s_load_dwordx2 s[4:5], s[0:1], %d
    s_load_dwordx2 s[6:7], s[0:1], %d
    s_load_dwordx2 s[10:11], s[0:1], %d
    v_lshrrev_b32 v1, 6, v0
    v_and_b32 v0, 63, v0
    s_and_b32 s3, s2, 7
    v_readfirstlane_b32 s12, v1
    s_lshr_b32 s15, s2, 3
    s_lshl_b32 s13, s3, 2
    s_and_b32 s24, s15, 3
    s_add_u32 s13, s13, s24
    s_lshr_b32 s14, s15, 2
    """ % (kaW, KA_B2 if mode == "mlp2" else KA_OUT, KA_WS))
    stamp(A, 0)
    A("s_cmp_ge_u32 s12, 4")
    A("s_cbranch_scc1 %s" % L(mode + "_loader"))
    NB = (NSLOT + 2)//3
    XA = 2
    WA = XA + 2*NB
    assert WA + NB <= 14
    ACC = 32
    EX = 52
    FR = 72
    A("""
    v_and_b32 v14, 15, v0
    v_lshrrev_b32 v15, 4, v0
    v_lshrrev_b32 v16, 1, v14
    v_xor_b32 v16, v15, v16
    s_lshl_b32 s26, s12, 11
    v_lshlrev_b32 v17, 7, v14
    v_add_u32 v17, s26, v17
    """)
    for st in range(2):
        A("v_xor_b32 v18, %d, v16" % (4*st))
        A("v_lshl_add_u32 %s, v18, 4, v17" % v(XA+st))
        for b in range(1, NB):
            A("v_add_u32 %s, %d, %s" % (v(XA+2*b+st), 3*SLOT*b, v(XA+st)))
    A("""
    v_lshrrev_b32 v18, 1, v15
    v_lshlrev_b32 v18, 4, v18
    v_and_b32 v19, 1, v15
    v_lshl_add_u32 v18, v19, 2, v18
    v_lshrrev_b32 v19, 2, v14
    v_add_u32 v18, v18, v19
    v_mul_u32_u24 v18, 160, v18
    v_and_b32 v19, 3, v14
    v_lshl_add_u32 v18, v19, 3, v18
    v_add_u32 %s, %d, v18
    """ % (v(WA), WOFF))
    for b in range(1, NB):
        A("v_add_u32 %s, %d, %s" % (v(WA+b), 3*SLOT*b, v(WA)))
    A("""
    s_lshl_b32 s26, s13, 6
    s_lshl_b32 s27, s12, 4
    s_add_u32 s26, s26, s27
    v_add_u32 v20, s26, v14
    s_mul_i32 s27, s14, 80
    v_lshl_add_u32 v21, v15, 2, s27
    v_lshlrev_b32 v22, 2, v20
    v_add_u32 v22, 0x%x, v22
    s_waitcnt lgkmcnt(0)
    global_load_dword v23, v22, s[10:11]
    """ % WS_G)
    if mode == "mlp2":
        A("v_lshlrev_b32 v24, 1, v21")
        for t in range(5):
            A("global_load_dwordx2 %s, v24, s[6:7] offset:%d" % (v(FR+2*t, 2), 32*t))
        A("s_waitcnt vmcnt(0)")
        for t in range(5):
            for q in range(2):
                A("v_lshlrev_b32 %s, 16, %s" % (v(ACC+4*t+2*q), v(FR+2*t+q)))
                A("v_and_b32 %s, 0xffff0000, %s" % (v(ACC+4*t+2*q+1), v(FR+2*t+q)))
    else:
        A("s_movk_i32 s27, 2560")
        A("v_mul_lo_u32 v24, v20, s27")
        A("v_lshl_add_u32 v24, v21, 2, v24")
        A("v_add_u32 v24, 0x%x, v24" % WS_BMIX)
        for t in range(5):
            A("global_load_dwordx4 %s, v24, s[10:11] offset:%d" % (v(EX+4*t, 4), 64*t))
    def fr(p, which):
        return FR + (p % 2)*24 + which*4
    def reads(p):
        out = []
        c = p // 2; j = p % 2
        slot = c % NSLOT; b = slot // 3; so = (slot % 3)*SLOT
        out.append("ds_read_b128 %s, %s offset:%d" % (v(fr(p, 0), 4), v(XA+2*b+j), so))
        for t in range(5):
            for u in range(2):
                out.append("ds_read_b64_tr_b16 %s, %s offset:%d" % (v(fr(p, 1+t)+2*u, 2), v(WA+b), so + (32*j + 8*u)*160 + t*32))
        return out
    def mfmas(p):
        out = []
        for t in range(5):
            acc = ACC + 4*t
            cc = "0" if (mode == "oproj" and p == 0) else v(acc, 4)
            out.append("v_mfma_f32_16x16x32_bf16 %s, %s, %s, %s" % (v(acc, 4), v(fr(p, 1+t), 4), v(fr(p, 0), 4), cc))
        return out
    A("s_barrier")
    stamp(A, 1)
    for r in reads(0): A(r)
    NP = 2*NCH
    for p in range(NP):
        A("s_waitcnt lgkmcnt(0)")
        if p % 2 == 1 and p+1 < NP:
            A("s_barrier")
        m = mfmas(p)
        rd = reads(p+1) if p+1 < NP else []
        k = 0
        for mi in range(5):
            A(m[mi])
            for _ in range(3):
                if k < len(rd):
                    A(rd[k]); k += 1
    A("s_nop 7")
    stamp(A, 2)
    if mode == "mlp2":
        A("v_sub_f32 v23, 1.0, v23")
        A("s_movk_i32 s27, 2560")
        A("v_mul_lo_u32 v24, v20, s27")
        A("v_lshl_add_u32 v24, v21, 2, v24")
        A("v_add_u32 v24, 0x%x, v24" % WS_BMIX)
        for t in range(5):
            for r in range(4):
                A("v_mul_f32 %s, v23, %s" % (v(ACC+4*t+r), v(ACC+4*t+r)))
            A("global_store_dwordx4 v24, %s, s[10:11] offset:%d" % (v(ACC+4*t, 4), 64*t))
    else:
        A("s_waitcnt vmcnt(0)")
        A("v_mul_u32_u24 v24, 1280, v20")
        A("v_lshl_add_u32 v24, v21, 1, v24")
        for t in range(5):
            for r in range(4):
                A("v_fma_f32 %s, v23, %s, %s" % (v(ACC+4*t+r), v(ACC+4*t+r), v(EX+4*t+r)))
            A("v_cvt_pk_bf16_f32 %s, %s, %s" % (v(FR+2*t), v(ACC+4*t), v(ACC+4*t+1)))
            A("v_cvt_pk_bf16_f32 %s, %s, %s" % (v(FR+2*t+1), v(ACC+4*t+2), v(ACC+4*t+3)))
            A("global_store_dwordx2 v24, %s, s[6:7] offset:%d" % (v(FR+2*t, 2), 32*t))
    if common.STAMPS:
        A("s_waitcnt vmcnt(0)")
    stamp(A, 3)
    stamp_flush(A, kid, 4)
    A("s_branch %s" % L(mode + "_done"))
    A.label(L(mode + "_loader"))
    A("""
    s_sub_u32 s12, s12, 4
    s_waitcnt lgkmcnt(0)
    s_add_u32 s16, s10, 0x%x
    s_addc_u32 s17, s11, 0
    s_mov_b32 s18, %d
    s_mov_b32 s19, 0x20000
    s_mov_b32 s20, s4
    s_mov_b32 s21, s5
    s_mov_b32 s22, %d
    s_mov_b32 s23, 0x20000
    v_lshrrev_b32 v14, 3, v0
    s_movk_i32 s26, %d
    v_mul_lo_u32 v14, v14, s26
    v_lshrrev_b32 v15, 4, v0
    v_and_b32 v21, 7, v0
    """ % (aoff, asize, wsize, astride))
    for j in range(2):
        A("v_add_u32 v22, %d, v15" % (4*j))
        A("v_and_b32 v22, 7, v22")
        A("v_xor_b32 v22, v21, v22")
        A("v_lshl_add_u32 %s, v22, 4, v14" % v(2+j))
        if j:
            A("v_add_u32 %s, %d, %s" % (v(2+j), j*(8*astride-1024), v(2+j)))
    A("s_mov_b32 s27, 52429")
    for jj in range(3):
        A("s_add_u32 s28, s12, %d" % (4*jj))
        A("s_lshl_b32 s28, s28, 6")
        A("v_add_u32 v21, s28, v0")
        A("v_mul_lo_u32 v22, v21, s27")
        A("v_lshrrev_b32 v22, 19, v22")
        A("v_mul_u32_u24 v23, 10, v22")
        A("v_sub_u32 v21, v21, v23")
        A("v_and_b32 v23, 0x33, v22")
        A("v_and_b32 v24, 4, v22")
        A("v_lshl_or_b32 v23, v24, 1, v23")
        A("v_and_b32 v24, 8, v22")
        A("v_lshrrev_b32 v24, 1, v24")
        A("v_or_b32 v23, v23, v24")
        A("v_mul_u32_u24 v23, 1280, v23")
        A("v_lshl_add_u32 %s, v21, 4, v23" % v(6+jj))
    A("""
    s_lshl_b32 s30, s13, 6
    s_lshl_b32 s26, s12, 4
    s_add_u32 s30, s30, s26
    s_mul_i32 s30, s30, %d
    s_mul_i32 s31, s14, 160
    s_lshl_b32 s32, s12, 11
    s_lshl_b32 s33, s12, 10
    """ % astride)
    def mk_issue(nw):
        def issue(c):
            slot = c % NSLOT
            A("s_add_u32 m0, s32, %d" % (slot*SLOT))
            A("s_nop 0")
            for j in range(2):
                A("buffer_load_dwordx4 %s, s[16:19], s30 offen offset:%d lds" % (v(2+j), 1024*j))
            A("s_add_u32 s30, s30, 128")
            for jj in range(nw):
                A("s_add_u32 m0, s33, %d" % (slot*SLOT + WOFF + 4096*jj))
                A("s_nop 0")
                A("buffer_load_dwordx4 %s, s[20:23], s31 offen lds" % v(6+jj))
            A("s_add_u32 s31, s31, %d" % (64*1280))
        return issue
    A("s_cmp_lt_u32 s12, 2")
    A("s_cbranch_scc0 %s" % L(mode + "_loaderB"))
    loader_loop(A, mk_issue(3), NCH, NSLOT, 5)
    A("s_branch %s" % L(mode + "_done"))
    A.label(L(mode + "_loaderB"))
    loader_loop(A, mk_issue(2), NCH, NSLOT, 4)
    A.label(L(mode + "_done"))

def gen_g64(mode, NSLOT, kid):
    def gen(A):
        name = mode + "_kernel"
        L = lambda x: "%s_%s" % (name, x)
        A.l.append(kernel_header(name))
        A("s_cmp_ge_u32 s2, 256")
        A("s_cbranch_scc1 %s" % L("exit"))
        g64_body(A, L, mode, NSLOT, kid)
        A.label(L("exit"))
        A("s_endpgm")
        return dict(name=name, vgpr=128, sgpr=102, grid=256, block=512, lds=NSLOT*SLOT)
    return gen
if __name__ == "__main__":
    check_conflicts()
```

```python
from common import *
import common
SLOT = 28672
WOFF = 16384
NCH = 10
CMAP = [0, 2, 1, 3, 4, 6, 5, 7]
def check_conflicts():
    for t in range(3):
        ad = []
        for l in range(64):
            G, i = l >> 4, l & 15
            cg = 4*(G & 1) + (i & 3)
            ad.append((8*(G >> 1) + (i >> 2))*192 + CMAP[cg]*8 + t*64)
        print("mlp1 W tile", t, conflicts(ad, 8))

C0 = -2.0*0.7978845608028654*1.4426950408889634
C1 = C0*0.044715

def gelu_pairs(A, acc, n, tmp, sC1, vC0, sOne):
    for q in range(0, n, 4):
        for h in range(2):
            x = acc + q + 2*h; t = tmp + 2*h
            A("v_pk_mul_f32 %s, %s, %s" % (v(t, 2), v(x, 2), v(x, 2)))
        for h in range(2):
            t = tmp + 2*h
            A("v_pk_fma_f32 %s, %s, %s, %s" % (v(t, 2), v(t, 2), s(sC1, 2), v(vC0, 2)))
        for h in range(2):
            x = acc + q + 2*h; t = tmp + 2*h
            A("v_pk_mul_f32 %s, %s, %s" % (v(t, 2), v(t, 2), v(x, 2)))
        for r in range(4):
            A("v_exp_f32 %s, %s" % (v(tmp+r), v(tmp+r)))
        A("s_nop 0")
        for h in range(2):
            t = tmp + 2*h
            A("v_pk_add_f32 %s, %s, %s" % (v(t, 2), v(t, 2), s(sOne, 2)))
        for r in range(4):
            A("v_rcp_f32 %s, %s" % (v(tmp+r), v(tmp+r)))
        A("s_nop 0")
        for h in range(2):
            x = acc + q + 2*h; t = tmp + 2*h
            A("v_pk_mul_f32 %s, %s, %s" % (v(x, 2), v(x, 2), v(t, 2)))

def mlp1_body(A, L, NSLOT, kid=2, xcdrows=False, sc1=False):
    A("""
    s_load_dwordx4 s[4:7], s[0:1], %d
    s_load_dwordx2 s[10:11], s[0:1], %d
    v_lshrrev_b32 v1, 6, v0
    v_and_b32 v0, 63, v0
    s_and_b32 s3, s2, 7
    v_readfirstlane_b32 s12, v1
    s_lshr_b32 s15, s2, 3
    """ % (KA_W1, KA_WS))
    if xcdrows:
        A("""
        s_lshl_b32 s13, s3, 1
        s_and_b32 s24, s15, 1
        s_add_u32 s13, s13, s24
        s_lshr_b32 s14, s15, 1
        """)
    else:
        A("""
        s_and_b32 s13, s3, 3
        s_lshl_b32 s13, s13, 2
        s_and_b32 s24, s15, 3
        s_add_u32 s13, s13, s24
        s_lshr_b32 s14, s3, 2
        s_lshl_b32 s14, s14, 3
        s_lshr_b32 s24, s15, 2
        s_add_u32 s14, s14, s24
        """)
    stamp(A, 0)
    A("s_cmp_ge_u32 s12, 4")
    A("s_cbranch_scc1 %s" % L("loader"))
    NB = (NSLOT + 1)//2
    XA = 2
    WA = XA + 4*NB
    assert WA + NB <= 12
    ACC = 16
    FR = 64
    TMP = 120
    A("""
    v_and_b32 v14, 31, v0
    v_lshrrev_b32 v15, 5, v0
    v_lshrrev_b32 v16, 1, v14
    v_and_b32 v16, 7, v16
    v_xor_b32 v16, v15, v16
    s_lshl_b32 s26, s12, 12
    v_lshlrev_b32 v17, 7, v14
    v_add_u32 v17, s26, v17
    """)
    for st in range(4):
        A("v_xor_b32 v18, %d, v16" % (2*st))
        A("v_lshl_add_u32 %s, v18, 4, v17" % v(XA+st))
        for b in range(1, NB):
            A("v_add_u32 %s, %d, %s" % (v(XA+4*b+st), 2*SLOT*b, v(XA+st)))
    cm = 0
    for cg, x in enumerate(CMAP): cm |= x << (4*cg)
    A("""
    v_lshrrev_b32 v18, 4, v0
    v_and_b32 v19, 15, v0
    v_and_b32 v20, 1, v18
    v_lshlrev_b32 v20, 2, v20
    v_and_b32 v21, 3, v19
    v_add_u32 v20, v20, v21
    v_lshlrev_b32 v20, 2, v20
    s_mov_b32 s26, 0x%08x
    v_lshrrev_b32 v20, v20, s26
    v_and_b32 v20, 7, v20
    v_lshrrev_b32 v21, 2, v19
    v_lshrrev_b32 v22, 1, v18
    v_lshl_add_u32 v22, v22, 3, v21
    v_mul_u32_u24 v22, 192, v22
    v_lshl_add_u32 v22, v20, 3, v22
    v_add_u32 %s, %d, v22
    """ % (cm, v(WA), WOFF))
    for b in range(1, NB):
        A("v_add_u32 %s, %d, %s" % (v(WA+b), 2*SLOT*b, v(WA)))
    A("""
    s_mul_i32 s26, s14, 192
    v_lshlrev_b32 v12, 4, v15
    v_add_u32 v12, s26, v12
    s_waitcnt lgkmcnt(0)
    """)
    for t in range(3):
        A("global_load_dwordx4 %s, v12, s[6:7] offset:%d" % (v(FR+8*t, 4), 64*t))
        A("global_load_dwordx4 %s, v12, s[6:7] offset:%d" % (v(FR+8*t+4, 4), 64*t + 32))
    A("s_waitcnt vmcnt(0)")
    for t in range(3):
        for q in range(8):
            A("v_lshlrev_b32 %s, 16, %s" % (v(ACC+16*t+2*q), v(FR+8*t+q)))
            A("v_and_b32 %s, 0xffff0000, %s" % (v(ACC+16*t+2*q+1), v(FR+8*t+q)))
    def fr(p, j, which):
        return FR + (p % 2)*32 + j*16 + which*4
    def reads(p):
        out = []
        c = p // 2; slot = c % NSLOT; b = slot // 2; so = (slot % 2)*SLOT
        for j in range(2):
            st = (p % 2)*2 + j
            out.append("ds_read_b128 %s, %s offset:%d" % (v(fr(p, j, 0), 4), v(XA+4*b+st), so))
            for t in range(3):
                for u in range(2):
                    out.append("ds_read_b64_tr_b16 %s, %s offset:%d" % (v(fr(p, j, 1+t)+2*u, 2), v(WA+b), so + (16*st + 4*u)*192 + t*64))
        return out
    def mfmas(p):
        out = []
        for j in range(2):
            for t in range(3):
                acc = ACC + 16*t
                out.append("v_mfma_f32_32x32x16_bf16 %s, %s, %s, %s" % (v(acc, 16), v(fr(p, j, 1+t), 4), v(fr(p, j, 0), 4), v(acc, 16)))
        return out
    A("s_barrier")
    stamp(A, 1)
    for r in reads(0): A(r)
    NP = 2*NCH
    for p in range(NP):
        A("s_waitcnt lgkmcnt(0)")
        m = mfmas(p)
        rd = reads(p+1) if p+1 < NP else []
        A(m[0])
        if p % 2 == 1 and p+1 < NP:
            A("s_barrier")
        k = 0
        for mi in range(1, 6):
            for _ in range(4):
                if k < len(rd) and mi <= 4:
                    A(rd[k]); k += 1
            A(m[mi])
    A("s_nop 15")
    stamp(A, 2)
    A("""
    s_mov_b32 s28, %s
    s_mov_b32 s29, %s
    s_mov_b32 s30, 1.0
    s_mov_b32 s31, 1.0
    v_mov_b32 v118, %s
    v_mov_b32 v119, %s
    s_lshl_b32 s26, s13, 7
    s_lshl_b32 s27, s12, 5
    s_add_u32 s26, s26, s27
    v_add_u32 v12, s26, v14
    s_movk_i32 s27, 3072
    v_mul_lo_u32 v12, v12, s27
    s_mul_i32 s26, s14, 192
    s_add_u32 s26, s26, 0x%x
    v_lshlrev_b32 v13, 4, v15
    v_add3_u32 v12, v12, v13, s26
    """ % (f32(C1), f32(C1), f32(C0), f32(C0), WS_H))
    for t in range(3):
        acc = ACC + 16*t
        gelu_pairs(A, acc, 16, TMP, 28, 118, 30)
        for q in range(8):
            A("v_cvt_pk_bf16_f32 %s, %s, %s" % (v(FR+8*t+q), v(acc+2*q), v(acc+2*q+1)))
        A("global_store_dwordx4 v12, %s, s[10:11] offset:%d%s" % (v(FR+8*t, 4), 64*t, " sc1" if sc1 else ""))
        A("global_store_dwordx4 v12, %s, s[10:11] offset:%d%s" % (v(FR+8*t+4, 4), 64*t + 32, " sc1" if sc1 else ""))
    if common.STAMPS:
        A("s_waitcnt vmcnt(0)")
    stamp(A, 3)
    stamp_flush(A, kid, 4)
    A("s_branch %s" % L("mlp1_done"))
    A.label(L("loader"))
    A("""
    s_sub_u32 s12, s12, 4
    s_waitcnt lgkmcnt(0)
    s_add_u32 s16, s10, 0x%x
    s_addc_u32 s17, s11, 0
    s_mov_b32 s18, %d
    s_mov_b32 s19, 0x20000
    s_mov_b32 s20, s4
    s_mov_b32 s21, s5
    s_mov_b32 s22, %d
    s_mov_b32 s23, 0x20000
    v_lshrrev_b32 v14, 3, v0
    v_mul_u32_u24 v14, 1280, v14
    v_lshrrev_b32 v15, 4, v0
    v_and_b32 v21, 7, v0
    """ % (WS_Y, S_*D_*2, D_*F_*2))
    for j in range(4):
        A("v_add_u32 v22, %d, v15" % (4*j))
        A("v_and_b32 v22, 7, v22")
        A("v_xor_b32 v22, v21, v22")
        A("v_lshl_add_u32 %s, v22, 4, v14" % v(2+j))
        if j:
            A("v_add_u32 %s, %d, %s" % (v(2+j), j*(10240-1024), v(2+j)))
    A("s_mul_i32 s26, s12, 192")
    A("s_mov_b32 s27, 43691")
    for j in range(3):
        A("s_add_u32 s28, s26, %d" % (64*j))
        A("v_add_u32 v21, s28, v0")
        A("v_mul_lo_u32 v22, v21, s27")
        A("v_lshrrev_b32 v22, 19, v22")
        A("v_mul_u32_u24 v23, 12, v22")
        A("v_sub_u32 v21, v21, v23")
        A("v_mul_u32_u24 v22, 3072, v22")
        A("v_lshl_add_u32 %s, v21, 4, v22" % v(6+j))
        if j:
            A("v_subrev_u32 %s, %d, %s" % (v(6+j), 1024*j, v(6+j)))
    A("""
    s_lshl_b32 s30, s13, 7
    s_lshl_b32 s26, s12, 5
    s_add_u32 s30, s30, s26
    s_mul_i32 s30, s30, 1280
    s_mul_i32 s31, s14, 192
    s_lshl_b32 s32, s12, 12
    s_mul_i32 s33, s12, 3072
    """)
    def issue(c):
        slot = c % NSLOT
        A("s_add_u32 m0, s32, %d" % (slot*SLOT))
        A("s_nop 0")
        for j in range(4):
            A("buffer_load_dwordx4 %s, s[16:19], s30 offen offset:%d lds" % (v(2+j), 1024*j))
        A("s_add_u32 m0, s33, %d" % (slot*SLOT + WOFF))
        A("s_add_u32 s30, s30, 128")
        for j in range(3):
            A("buffer_load_dwordx4 %s, s[20:23], s31 offen offset:%d lds" % (v(6+j), 1024*j))
        A("s_add_u32 s31, s31, %d" % (64*3072))
    loader_loop(A, issue, NCH, NSLOT, 7)
    A.label(L("mlp1_done"))

def gen_mlp1(A, name="mlp1_kernel"):
    L = lambda x: "%s_%s" % (name, x)
    A.l.append(kernel_header(name))
    A("s_cmp_ge_u32 s2, 256")
    A("s_cbranch_scc1 %s" % L("exit"))
    NSLOT = 4
    mlp1_body(A, L, NSLOT)
    A.label(L("exit"))
    A("s_endpgm")
    return dict(name=name, vgpr=128, sgpr=102, grid=256, block=512, lds=NSLOT*SLOT)
if __name__ == "__main__":
    check_conflicts()
```

```python
import common, sys
import build, k1, k2b, kmlp1, kg64, k2m
def mk(path, stamps=False, opt={}):
    common.STAMPS = stamps
    k2m.OPT.clear(); k2m.OPT.update(opt)
    return build.build([k1.gen_k1, k2m.gen_k2m, kg64.gen_g64("oproj", 8, 4)], path)
mk("m_all.s")
mk("m_alls.s", True)
mk("m_alls_p1.s", True, {"aprio":1})
mk("m_alls_na.s", True, {"noattn":1})
```

```python
from asmlib import *
S_, D_, H_, DH, F_ = 2048, 640, 32, 20, 1536
KA_X, KA_WQKV, KA_WO, KA_BX, KA_W1, KA_B1, KA_W2, KA_B2, KA_GW, KA_OUT, KA_DBG, KA_WS = [8*i for i in range(12)]
CHUNK = 21504
HEADKV = 8*CHUNK
OFF_KHI = 8192
OFF_V = 10240
VT = 1408
VB = 352
WS_KV   = 0
WS_QLO  = 0x600000
WS_QHI  = 0x800000
WS_Y    = 0x900000
WS_G    = 0xC00000
WS_H    = 0xD00000
WS_O    = 0x1400000
WS_BMIX = 0x1800000
WS_END  = 0x1E00000
QSCALE = 1.4426950408889634 / (20 ** 0.5)
import struct
def f32(x):
    return "0x%08x" % struct.unpack("<I", struct.pack("<f", x))[0]

def wave_reduce_add(A, regs, tmps):
    n = len(regs)
    def pad(k):
        need = k - (n - 1)
        if need > 0:
            A("s_nop %d" % (need - 1))
    for sh in (8, 4, 2, 1):
        pad(2)
        for r in regs:
            A("v_add_f32_dpp %s, %s, %s row_ror:%d row_mask:0xf bank_mask:0xf" % (v(r), v(r), v(r), sh))
    for sw in ("v_permlane16_swap_b32", "v_permlane32_swap_b32"):
        for r, t in zip(regs, tmps):
            A("v_mov_b32 %s, %s" % (v(t), v(r)))
        pad(2)
        A("s_nop 0")
        for r, t in zip(regs, tmps):
            A("%s %s, %s" % (sw, v(r), v(t)))
        pad(1)
        A("s_nop 0")
        for r, t in zip(regs, tmps):
            A("v_add_f32 %s, %s, %s" % (v(r), v(r), v(t)))

WS_STAMP = 0x2000000
STAMPS = False
NSTAMP = 9
def stamp(A, idx, wave="s97", who=0):
    if not STAMPS: return
    lab = A.new("st")
    A("s_cmp_lg_u32 %s, %d" % (wave, who))
    A("s_cbranch_scc1 %s" % lab)
    A("s_memrealtime s[%d:%d]" % (60+4*idx, 61+4*idx))
    A("s_memtime s[%d:%d]" % (62+4*idx, 63+4*idx))
    A.label(lab)
def stamp_init(A):
    if not STAMPS: return
    for i in range(60, 60+4*NSTAMP):
        A("s_mov_b32 s%d, 0" % i)
def stamp_flush(A, kid, wave="s97", who=0, wgreg="s96"):
    if not STAMPS: return
    lab = A.new("stf")
    A("s_waitcnt lgkmcnt(0)")
    A("s_cmp_lg_u32 %s, %d" % (wave, who))
    A("s_cbranch_scc1 %s" % lab)
    A("s_mov_b64 exec, 1")
    A("s_lshl_b32 s58, %s, 8" % wgreg)
    A("s_add_u32 s58, s58, 0x%x" % (WS_STAMP + kid*0x20000))
    A("v_mov_b32 v0, s58")
    for i in range(NSTAMP):
        for j in range(4):
            A("v_mov_b32 v%d, s%d" % (2+j, 60+4*i+j))
        A("global_store_dwordx4 v0, v[2:5], s[10:11] offset:%d" % (16*i))
        A("s_nop 1")
    A("s_mov_b64 exec, -1")
    A.label(lab)

WS_FLAG = 0x1F00000
FL_LN, FL_QKV, FL_H, FL_O, FL_NONCE = 0x0, 0x800, 0x1000, 0x1800, 0x2000
def nonce_make(A):
    A("""
    s_load_dwordx2 s[8:9], s[0:1], %d
    s_mov_b64 exec, 1
    v_mov_b32 v2, 0x%x
    global_load_dword v3, v2, s[10:11] sc1
    s_waitcnt vmcnt(0) lgkmcnt(0)
    v_add_u32 v3, 1, v3
    v_max_u32 v3, 1, v3
    global_store_dword v2, v3, s[10:11] sc1
    v_mov_b32 v2, 0
    global_store_dword v2, v3, s[8:9] sc1
    s_mov_b64 exec, -1
    """ % (KA_DBG, WS_FLAG + FL_NONCE))
def nonce_get(A):
    lp, ok = A.new("ng"), A.new("ngok")
    A("""
    s_load_dwordx2 s[8:9], s[0:1], %d
    v_mov_b32 v2, 0
    s_mov_b32 s56, 0
    s_waitcnt lgkmcnt(0)
    """ % KA_DBG)
    A.label(lp)
    A("""
    global_load_dword v3, v2, s[8:9] sc1
    s_add_u32 s56, s56, 1
    s_waitcnt vmcnt(0)
    v_readfirstlane_b32 s100, v3
    s_nop 3
    s_cmp_lg_u32 s100, 0
    s_cbranch_scc1 %s
    s_sleep 4
    s_cmp_lt_u32 s56, 0x80000
    s_cbranch_scc1 %s
    """ % (ok, lp))
    A.label(ok)
def flag_signal(A, off, grp_sreg, member_sreg):
    A("""
    s_lshl_b32 s56, %s, 7
    s_lshl_b32 s57, %s, 2
    s_add_u32 s56, s56, s57
    s_add_u32 s56, s56, 0x%x
    v_mov_b32 v2, s56
    v_mov_b32 v3, s100
    s_mov_b64 exec, 1
    global_store_dword v2, v3, s[10:11] sc1
    s_mov_b64 exec, -1
    """ % (grp_sreg, member_sreg, WS_FLAG + off))
def flag_wait(A, off, grp_sreg, n):
    lp, ok = A.new("fw"), A.new("fwok")
    A("""
    s_lshl_b32 s56, %s, 7
    s_add_u32 s56, s56, 0x%x
    v_mbcnt_lo_u32_b32 v2, -1, 0
    v_mbcnt_hi_u32_b32 v2, -1, v2
    v_min_u32 v2, %d, v2
    v_lshl_add_u32 v2, v2, 2, s56
    s_mov_b32 s57, 0
    """ % (grp_sreg, WS_FLAG + off, n-1))
    A.label(lp)
    A("""
    global_load_dword v3, v2, s[10:11] sc1
    s_add_u32 s57, s57, 1
    s_waitcnt vmcnt(0)
    v_cmp_ne_u32 vcc, s100, v3
    s_cbranch_vccz %s
    s_sleep 2
    s_cmp_lt_u32 s57, 0x80000
    s_cbranch_scc1 %s
    """ % (ok, lp))
    A.label(ok)

def prefetch(A, base, start_sreg, nbytes, wave_sreg, nwaves, vlane, vt, vdst, stride=128, soff=0):
    per_instr = 64*stride
    ninstr = -(-nbytes // per_instr)
    per_wave = -(-ninstr // nwaves)
    A("s_mul_i32 s98, %s, %d" % (wave_sreg, per_wave*per_instr))
    A("s_add_u32 s98, s98, %s" % start_sreg)
    if soff: A("s_add_u32 s98, s98, 0x%x" % soff)
    A("v_mul_u32_u24 %s, %d, %s" % (v(vt), stride, v(vlane)))
    A("v_add_u32 %s, s98, %s" % (v(vt), v(vt)))
    A("s_add_u32 s99, %s, 0x%x" % (start_sreg, soff + nbytes - 4))
    for i in range(per_wave):
        A("v_min_u32 %s, s99, %s" % (v(vt+1), v(vt)))
        A("global_load_dword %s, %s, %s" % (v(vdst), v(vt+1), base))
        if i + 1 < per_wave:
            A("v_add_u32 %s, %d, %s" % (v(vt), per_instr, v(vt)))
    return per_wave

def loader_loop(A, issue, NCH, NSLOT, per):
    first = min(2, NSLOT, NCH)
    issued = 0
    for c in range(first):
        issue(c); issued += 1
    for c in range(NCH):
        A("s_waitcnt vmcnt(%d)" % (per*(issued - c - 1)))
        A("s_barrier")
        while issued < NCH and issued < c + NSLOT:
            issue(issued); issued += 1
```

```python
from common import *
import common
Q0, K0, V0 = 0, 5, 10
POS = {}
def _assign():
    res = {K0+0:0, K0+1:1, K0+2:2, K0+3:3, K0+4:2, V0+0:0, V0+1:1, V0+2:3, V0+3:1, V0+4:2,
           Q0+2:0, Q0+4:0, Q0+0:1, Q0+1:2, Q0+3:3}
    used = {0:0,1:0,2:0,3:0}
    for g in sorted(res):
        r = res[g]
        POS[g] = used[r]*4 + r
        used[r] += 1
_assign()
INVPOS = [14]*16
for g, p in POS.items():
    INVPOS[p] = g
def cgrp(base, hd, d0):
    col = hd*20 + d0
    return (base + col//8, (col % 8)//4)
TILE = {
  'A': [cgrp(K0,0,0), cgrp(K0,0,8), cgrp(K0,0,4), cgrp(K0,0,12), cgrp(K0,1,0), cgrp(K0,1,8), cgrp(K0,1,4), cgrp(K0,1,12)],
  'B': [cgrp(Q0,0,0), cgrp(Q0,0,8), cgrp(Q0,0,4), cgrp(Q0,0,12), cgrp(Q0,1,0), cgrp(Q0,1,8), cgrp(Q0,1,4), cgrp(Q0,1,12)],
  'C': [cgrp(V0,0,0), cgrp(V0,0,4), cgrp(V0,0,8), cgrp(V0,0,12), cgrp(V0,0,16), cgrp(K0,0,16), cgrp(K0,1,16), cgrp(V0,0,0)],
  'D': [cgrp(V0,1,0), cgrp(V0,1,4), cgrp(V0,1,8), cgrp(V0,1,12), cgrp(V0,1,16), cgrp(Q0,0,16), cgrp(Q0,1,16), cgrp(V0,1,0)],
}
def tile_const(T):
    c = 0
    for cg, (g, h) in enumerate(TILE[T]):
        c |= (2*POS[g] + h) << (8*cg)
    return c
def check_conflicts():
    for T in TILE:
        ad = []
        for l in range(64):
            G, i = l >> 4, l & 15
            cg = 4*(G & 1) + (i & 3)
            g, h = TILE[T][cg]
            u8 = (2*POS[g] + h) ^ ((i >> 2) << 3)
            ad.append((8*(G >> 1) + (i >> 2))*256 + u8*8)
        print("K1 W tile", T, "conflicts", conflicts(ad, 8))
    for st in range(4):
        ad = []
        for l in range(64):
            r = l & 31; hh = l >> 5; f = (r >> 1) & 7
            ad.append(r*128 + (((hh ^ f) ^ (2*st)) << 4))
        print("K1 x step", st, "conflicts", conflicts(ad, 16))

NCH = 10
SLOT = 32768
NSLOT = 4

OPT = {}
def gen_k1(A, name="k1_kernel"):
    L = lambda x: "%s_%s" % (name, x)
    A.l.append(kernel_header(name))
    A("s_cmp_ge_u32 s2, 256")
    A("s_cbranch_scc1 %s" % L("end"))
    A("""
    s_load_dwordx4 s[4:7], s[0:1], %d
    s_load_dwordx2 s[8:9], s[0:1], %d
    s_load_dwordx2 s[10:11], s[0:1], %d
    v_lshrrev_b32 v1, 6, v0
    v_and_b32 v0, 63, v0
    s_and_b32 s3, s2, 7
    v_readfirstlane_b32 s12, v1
    s_lshr_b32 s15, s2, 3
    s_and_b32 s13, s3, 3
    s_lshl_b32 s13, s13, 2
    s_and_b32 s24, s15, 3
    s_add_u32 s13, s13, s24
    s_lshr_b32 s14, s3, 2
    s_lshl_b32 s14, s14, 3
    s_lshr_b32 s24, s15, 2
    s_add_u32 s14, s14, s24
    """ % (KA_X, KA_GW, KA_WS))
    stamp(A, 0)
    A("s_cmp_ge_u32 s12, 4")
    A("s_cbranch_scc1 %s" % L("loader"))
    XA = 2
    WA = 10
    ACC = 64
    FR = 128
    A("""
    s_and_b32 s24, s12, 1
    s_lshr_b32 s25, s12, 1
    v_and_b32 v14, 31, v0
    v_lshrrev_b32 v15, 5, v0
    v_lshrrev_b32 v16, 1, v14
    v_and_b32 v16, 7, v16
    v_xor_b32 v16, v15, v16
    s_lshl_b32 s26, s24, 13
    v_lshlrev_b32 v17, 7, v14
    v_add_u32 v17, s26, v17
    """)
    for st in range(4):
        A("v_xor_b32 v18, %d, v16" % (2*st))
        A("v_lshl_add_u32 %s, v18, 4, v17" % v(XA+st))
        A("v_add_u32 %s, 0x10000, %s" % (v(XA+4+st), v(XA+st)))
    A("""
    v_lshrrev_b32 v18, 4, v0
    v_and_b32 v19, 15, v0
    v_and_b32 v20, 1, v18
    v_lshlrev_b32 v20, 2, v20
    v_and_b32 v21, 3, v19
    v_add_u32 v20, v20, v21
    v_lshlrev_b32 v20, 3, v20
    v_lshrrev_b32 v21, 2, v19
    v_lshrrev_b32 v22, 1, v18
    v_lshl_add_u32 v22, v22, 3, v21
    v_lshlrev_b32 v22, 8, v22
    v_add_u32 v22, 16384, v22
    v_lshlrev_b32 v21, 3, v21
    """)
    A("s_cmp_eq_u32 s25, 0")
    A("s_cbranch_scc0 %s" % L("nw1"))
    for nw, tiles in ((0, ('A', 'B')), (1, ('C', 'D'))):
        if nw == 1:
            A.label(L("nw1"))
        for ti, T in enumerate(tiles):
            c = tile_const(T)
            A("s_mov_b32 s26, 0x%08x" % (c & 0xffffffff))
            A("s_mov_b32 s27, 0x%08x" % (c >> 32))
            A("v_lshrrev_b64 v[24:25], v20, s[26:27]")
            A("v_and_b32 v24, 0xff, v24")
            A("v_xor_b32 v24, v24, v21")
            A("v_lshl_add_u32 %s, v24, 3, v22" % v(WA+ti))
            A("v_add_u32 %s, 0x10000, %s" % (v(WA+2+ti), v(WA+ti)))
        def fr(p, j, which):
            return FR + (p % 2)*32 + j*16 + which*4
        def reads(p):
            out = []
            c = p // 2
            slot = c % NSLOT
            hi = 4 if slot >= 2 else 0
            so = (slot % 2)*SLOT
            for j in range(2):
                st = (p % 2)*2 + j
                rr = []
                for t in range(2):
                    rr.append("ds_read_b128 %s, %s offset:%d" % (v(fr(p, j, t), 4), v(XA+hi+st), so + t*4096))
                for t in range(2):
                    for u in range(2):
                        rr.append("ds_read_b64_tr_b16 %s, %s offset:%d" % (v(fr(p, j, 2+t)+2*u, 2), v(WA+hi//2+t), so + st*4096 + u*1024))
                out += [rr[0], rr[2], rr[3], rr[4], rr[5], rr[1]]
            return out
        def mfmas(p):
            out = []
            for j in range(2):
                for tm in range(2):
                    for tn in range(2):
                        acc = ACC + 16*(2*tm + tn)
                        xf, wf = fr(p, j, tm), fr(p, j, 2+tn)
                        aa, bb = (wf, xf) if nw == 0 else (xf, wf)
                        cc = "0" if (p == 0 and j == 0) else v(acc, 16)
                        out.append("v_mfma_f32_32x32x16_bf16 %s, %s, %s, %s" % (v(acc, 16), v(aa, 4), v(bb, 4), cc))
            return out
        A("s_barrier")
        stamp(A, 1)
        for r in reads(0):
            A(r)
        NP = 2*NCH
        for p in range(NP):
            if p == OPT.get("wpf_phase", -1):
                for wv, (ka, size) in enumerate(((KA_W1, D_*F_*2), (KA_W2, F_*D_*2), (KA_WO, D_*D_*2))):
                    lab = A.new("wpf")
                    A("s_cmp_lg_u32 s12, %d" % wv)
                    A("s_cbranch_scc1 %s" % lab)
                    A("s_load_dwordx2 s[48:49], s[0:1], %d" % ka)
                    A("s_mul_i32 s50, s2, %d" % (size//256))
                    A("v_lshlrev_b32 v60, 7, v0")
                    A("v_min_u32 v60, %d, v60" % (size//256 - 4))
                    A("v_add_u32 v60, s50, v60")
                    A("s_waitcnt lgkmcnt(0)")
                    A("global_load_dword v61, v60, s[48:49]")
                    A.label(lab)
            A("s_waitcnt lgkmcnt(0)")
            m = mfmas(p)
            rd = reads(p+1) if p+1 < NP else []
            A(m[0]); A(m[1])
            if p % 2 == 1 and p+1 < NP:
                A("s_barrier")
            k = 0
            for mi in range(2, 8):
                for _ in range(3):
                    if k < len(rd) and mi <= 5:
                        A(rd[k]); k += 1
                A(m[mi])
        A("s_nop 15")
        stamp(A, 2)
        A("""
        s_lshl_b32 s28, s13, 2
        s_lshl_b32 s29, s24, 1
        s_add_u32 s28, s28, s29
        s_lshl_b32 s30, s14, 1
        """)
        P = 16
        if nw == 0:
            A("v_lshlrev_b32 v2, 4, v0")
            A("s_mov_b32 s36, %s" % f32(QSCALE))
            for tm in range(2):
                A("s_add_u32 s31, s28, %d" % tm)
                A("""
                s_lshr_b32 s32, s31, 3
                s_mul_i32 s32, s32, %d
                s_and_b32 s33, s31, 7
                s_lshl_b32 s33, s33, 10
                s_add_u32 s32, s32, s33
                s_lshl_b32 s34, s31, 10
                """ % CHUNK)
                for hd in range(2):
                    accK = ACC + 16*(2*tm + 0) + 8*hd
                    accQ = ACC + 16*(2*tm + 1) + 8*hd
                    A("s_add_u32 s35, s30, %d" % hd)
                    A("s_mul_i32 s37, s35, %d" % HEADKV)
                    A("s_add_u32 s37, s37, s32")
                    A("v_add_u32 v3, s37, v2")
                    for q in range(4):
                        A("v_cvt_pk_bf16_f32 %s, %s, %s" % (v(P+q), v(accK+2*q), v(accK+2*q+1)))
                    A("global_store_dwordx4 v3, %s, s[10:11]" % v(P, 4))
                    A("s_lshl_b32 s37, s35, 16")
                    A("s_add_u32 s37, s37, s34")
                    A("s_add_u32 s37, s37, 0x%x" % WS_QLO)
                    A("v_add_u32 v4, s37, v2")
                    for q in range(8):
                        A("v_mul_f32 %s, s36, %s" % (v(accQ+q), v(accQ+q)))
                    for q in range(4):
                        A("v_cvt_pk_bf16_f32 %s, %s, %s" % (v(P+4+q), v(accQ+2*q), v(accQ+2*q+1)))
                    A("global_store_dwordx4 v4, %s, s[10:11]" % v(P+4, 4))
                    A("s_nop 1")
        else:
            A("""
            v_cmp_gt_u32 vcc, 20, v14
            v_and_b32 v5, 30, v14
            v_cmp_eq_u32 s[40:41], 28, v5
            s_or_b64 s[42:43], vcc, s[40:41]
            v_subrev_u32 v5, 8, v14
            v_cndmask_b32 v5, v14, v5, s[40:41]
            v_lshlrev_b32 v5, 4, v5
            v_mul_u32_u24 v6, 352, v15
            v_add_u32 v5, v5, v6
            v_subrev_u32 v7, 20, v14
            v_cmp_gt_u32 s[44:45], 8, v7
            v_lshrrev_b32 v8, 2, v7
            v_and_b32 v7, 3, v7
            v_lshlrev_b32 v7, 6, v7
            v_lshl_add_u32 v7, v15, 3, v7
            v_mov_b32 v9, 0x3f803f80
            v_cmp_eq_u32 vcc, 29, v14
            v_mov_b32 v11, 0
            s_nop 0
            v_cndmask_b32 v9, v9, v11, vcc
            v_mov_b32 v10, 1.0
            v_mov_b32 v11, %s
            v_cndmask_b32 v10, v10, v11, s[44:45]
            s_mov_b64 s[46:47], exec
            """ % f32(QSCALE))
            for tm in range(2):
                A("s_add_u32 s31, s28, %d" % tm)
                A("""
                s_lshr_b32 s32, s31, 3
                s_mul_i32 s32, s32, %d
                s_and_b32 s33, s31, 7
                s_mul_i32 s34, s33, %d
                s_add_u32 s34, s34, s32
                s_add_u32 s34, s34, %d
                s_lshl_b32 s35, s33, 8
                s_add_u32 s35, s35, s32
                s_add_u32 s35, s35, %d
                s_lshl_b32 s38, s31, 8
                s_add_u32 s38, s38, 0x%x
                """ % (CHUNK, VT, OFF_V, OFF_KHI, WS_QHI))
                for tn in range(2):
                    acc = ACC + 16*(2*tm + tn)
                    if tn == 1:
                        for q in range(16):
                            A("v_mul_f32 %s, v10, %s" % (v(acc+q), v(acc+q)))
                    for q in range(8):
                        A("v_cvt_pk_bf16_f32 %s, %s, %s" % (v(P+q), v(acc+2*q), v(acc+2*q+1)))
                    A("v_add_u32 v12, s30, v8")
                    if tn == 0:
                        A("s_mov_b32 s37, %d" % HEADKV)
                        A("v_mul_lo_u32 v12, v12, s37")
                        A("v_add3_u32 v12, v12, s35, v7")
                    else:
                        A("v_lshlrev_b32 v12, 14, v12")
                        A("v_add3_u32 v12, v12, s38, v7")
                    A("s_mov_b64 exec, s[44:45]")
                    for q4 in range(4):
                        A("global_store_dwordx2 v12, %s, s[10:11] offset:%d" % (v(P+2*q4, 2), 16*q4))
                    A("s_mov_b64 exec, s[46:47]")
                    A("s_add_u32 s37, s30, %d" % tn)
                    A("s_mul_i32 s37, s37, %d" % HEADKV)
                    A("s_add_u32 s37, s37, s34")
                    A("v_add_u32 v13, s37, v5")
                    A("s_nop 0")
                    for q in range(8):
                        A("v_cndmask_b32 %s, %s, v9, s[40:41]" % (v(P+8+q), v(P+q)))
                    A("s_mov_b64 exec, s[42:43]")
                    A("global_store_dwordx4 v13, %s, s[10:11]" % v(P+8, 4))
                    A("global_store_dwordx4 v13, %s, s[10:11] offset:704" % v(P+12, 4))
                    A("s_mov_b64 exec, s[46:47]")
                    A("s_nop 1")
        if common.STAMPS:
            A("s_waitcnt vmcnt(0)")
        stamp(A, 3)
        stamp_flush(A, 0, 4)
        A("s_endpgm")
    A.label(L("loader"))
    A("""
    s_sub_u32 s12, s12, 4
    s_waitcnt lgkmcnt(0)
    s_mov_b32 s16, s4
    s_mov_b32 s17, s5
    s_mov_b32 s18, %d
    s_mov_b32 s19, 0x20000
    s_mov_b32 s20, s6
    s_mov_b32 s21, s7
    s_mov_b32 s22, %d
    s_mov_b32 s23, 0x20000
    """ % (S_*D_*2, D_*3*D_*2))
    A("""
    s_lshl_b32 s24, s2, 3
    s_lshl_b32 s25, s12, 1
    s_add_u32 s24, s24, s25
    s_mul_i32 s25, s24, 1280
    v_lshlrev_b32 v10, 4, v0
    v_lshlrev_b32 v11, 2, v0
    v_add_u32 v12, s25, v10
    v_add_u32 v13, s25, v11
    global_load_dwordx4 v[16:19], v12, s[4:5]
    global_load_dword v20, v13, s[4:5] offset:1024
    global_load_dwordx4 v[24:27], v12, s[4:5] offset:1280
    global_load_dword v28, v13, s[4:5] offset:2304
    global_load_dwordx4 v[32:35], v10, s[8:9]
    global_load_dword v36, v11, s[8:9] offset:1024
    """)
    A("""
    v_lshrrev_b32 v14, 3, v0
    v_mul_u32_u24 v14, 1280, v14
    v_lshrrev_b32 v15, 4, v0
    v_and_b32 v21, 7, v0
    """)
    for j in range(4):
        A("v_add_u32 v22, %d, v15" % (4*j))
        A("v_and_b32 v22, 7, v22")
        A("v_xor_b32 v22, v21, v22")
        A("v_lshl_add_u32 %s, v22, 4, v14" % v(2+j))
        if j:
            A("v_add_u32 %s, %d, %s" % (v(2+j), j*(10240-1024), v(2+j)))
    inv = 0
    for p, g in enumerate(INVPOS):
        inv |= g << (4*p)
    A("""
    v_and_b32 v21, 15, v0
    v_lshlrev_b32 v22, 2, v15
    v_xor_b32 v21, v21, v22
    v_lshlrev_b32 v21, 2, v21
    s_mov_b32 s26, 0x%08x
    s_mov_b32 s27, 0x%08x
    v_lshrrev_b64 v[22:23], v21, s[26:27]
    v_and_b32 v22, 15, v22
    v_mul_u32_u24 v23, 52, v22
    v_lshrrev_b32 v23, 8, v23
    v_mul_u32_u24 v21, 5, v23
    v_sub_u32 v22, v22, v21
    v_lshlrev_b32 v22, 4, v22
    v_mul_u32_u24 v23, 1280, v23
    v_add_u32 v22, v22, v23
    v_mul_u32_u24 v23, 3840, v15
    v_add_u32 v6, v22, v23
    """ % (inv & 0xffffffff, inv >> 32))
    for j in range(1, 4):
        A("v_add_u32 %s, %d, v6" % (v(6+j), j*(4*3840-1024)))
    A("""
    s_lshl_b32 s30, s13, 7
    s_lshl_b32 s26, s12, 5
    s_add_u32 s30, s30, s26
    s_mul_i32 s30, s30, 1280
    s_mul_i32 s31, s12, %d
    s_mul_i32 s26, s14, 80
    s_add_u32 s31, s31, s26
    s_lshl_b32 s32, s12, 12
    """ % (16*3840))
    def issue(c):
        slot = c % NSLOT
        A("s_add_u32 m0, s32, %d" % (slot*SLOT))
        A("s_nop 0")
        for j in range(4):
            A("buffer_load_dwordx4 %s, s[16:19], s30 offen offset:%d lds" % (v(2+j), 1024*j))
        A("s_add_u32 m0, s32, %d" % (slot*SLOT + 16384))
        A("s_add_u32 s30, s30, 128")
        for j in range(4):
            A("buffer_load_dwordx4 %s, s[20:23], s31 offen offset:%d lds" % (v(6+j), 1024*j))
        A("s_add_u32 s31, s31, %d" % (64*3840))
    loader_loop(A, issue, NCH, NSLOT, 8)
    def unpack(dst, src16, src4):
        for q in range(4):
            A("v_lshlrev_b32 %s, 16, %s" % (v(dst+2*q), v(src16+q)))
            A("v_and_b32 %s, 0xffff0000, %s" % (v(dst+2*q+1), v(src16+q)))
        A("v_lshlrev_b32 %s, 16, %s" % (v(dst+8), v(src4)))
        A("v_and_b32 %s, 0xffff0000, %s" % (v(dst+9), v(src4)))
    unpack(40, 16, 20); unpack(50, 24, 28); unpack(60, 32, 36)
    for r in range(2):
        b = 40 + 10*r
        A("v_add_f32 %s, %s, %s" % (v(70+r), v(b), v(b+1)))
        A("v_mul_f32 %s, %s, %s" % (v(72+r), v(b), v(60)))
        for q in range(2, 10):
            A("v_add_f32 %s, %s, %s" % (v(70+r), v(70+r), v(b+q)))
        for q in range(1, 10):
            A("v_fmac_f32 %s, %s, %s" % (v(72+r), v(b+q), v(60+q)))
    wave_reduce_add(A, [70, 71, 72, 73], [74, 75, 76, 77])
    A("s_mov_b32 s26, %s" % f32(1.0/640))
    for r in range(2):
        b = 40 + 10*r
        A("v_mul_f32 %s, s26, %s" % (v(70+r), v(70+r)))
        for q in range(10):
            A("v_sub_f32 %s, %s, %s" % (v(b+q), v(b+q), v(70+r)))
        A("v_mul_f32 %s, %s, %s" % (v(74+r), v(b), v(b)))
        for q in range(1, 10):
            A("v_fmac_f32 %s, %s, %s" % (v(74+r), v(b+q), v(b+q)))
    wave_reduce_add(A, [74, 75], [76, 77])
    A("s_mov_b32 s27, %s" % f32(1e-5))
    A("s_mov_b32 s28, %s" % f32(-1.4426950408889634))
    for r in range(2):
        b = 40 + 10*r
        A("v_mov_b32 v78, s27")
        A("v_fmac_f32 v78, s26, %s" % v(74+r))
        A("v_rsq_f32 v78, v78")
        A("v_mul_f32 %s, s28, %s" % (v(72+r), v(72+r)))
        A("v_exp_f32 %s, %s" % (v(72+r), v(72+r)))
        for q in range(10):
            A("v_mul_f32 %s, %s, v78" % (v(b+q), v(b+q)))
        A("v_add_f32 %s, 1.0, %s" % (v(72+r), v(72+r)))
        A("v_rcp_f32 %s, %s" % (v(72+r), v(72+r)))
        for q in range(5):
            A("v_cvt_pk_bf16_f32 %s, %s, %s" % (v(80+8*r+q), v(b+2*q), v(b+2*q+1)))
    A("s_add_u32 s25, s25, 0x%x" % WS_Y)
    A("v_add_u32 v12, s25, v10")
    A("v_add_u32 v13, s25, v11")
    A("global_store_dwordx4 v12, v[80:83], s[10:11]")
    A("global_store_dword v13, v84, s[10:11] offset:1024")
    A("global_store_dwordx4 v12, v[88:91], s[10:11] offset:1280")
    A("global_store_dword v13, v92, s[10:11] offset:2304")
    A("s_lshl_b32 s24, s24, 2")
    A("s_add_u32 s24, s24, 0x%x" % WS_G)
    A("v_mov_b32 v14, s24")
    A("v_cmp_eq_u32 vcc, 0, v0")
    A("s_and_saveexec_b64 s[40:41], vcc")
    A("global_store_dwordx2 v14, v[72:73], s[10:11]")
    A.label(L("end"))
    A("s_endpgm")
    return dict(name=name, vgpr=192, sgpr=102, grid=256, block=512, lds=NSLOT*SLOT)

if __name__ == "__main__":
    check_conflicts()
```

```python
from common import *
import common
SLOT = 28672
WOFF = 16384
NCH = 10
CMAP = [0, 2, 1, 3, 4, 6, 5, 7]
def check_conflicts():
    for t in range(3):
        ad = []
        for l in range(64):
            G, i = l >> 4, l & 15
            cg = 4*(G & 1) + (i & 3)
            ad.append((8*(G >> 1) + (i >> 2))*192 + CMAP[cg]*8 + t*64)
        print("mlp1 W tile", t, conflicts(ad, 8))

C0 = -2.0*0.7978845608028654*1.4426950408889634
C1 = C0*0.044715

def gelu_pairs(A, acc, n, tmp, sC1, vC0, sOne):
    for q in range(0, n, 4):
        for h in range(2):
            x = acc + q + 2*h; t = tmp + 2*h
            A("v_pk_mul_f32 %s, %s, %s" % (v(t, 2), v(x, 2), v(x, 2)))
        for h in range(2):
            t = tmp + 2*h
            A("v_pk_fma_f32 %s, %s, %s, %s" % (v(t, 2), v(t, 2), s(sC1, 2), v(vC0, 2)))
        for h in range(2):
            x = acc + q + 2*h; t = tmp + 2*h
            A("v_pk_mul_f32 %s, %s, %s" % (v(t, 2), v(t, 2), v(x, 2)))
        for r in range(4):
            A("v_exp_f32 %s, %s" % (v(tmp+r), v(tmp+r)))
        A("s_nop 0")
        for h in range(2):
            t = tmp + 2*h
            A("v_pk_add_f32 %s, %s, %s" % (v(t, 2), v(t, 2), s(sOne, 2)))
        for r in range(4):
            A("v_rcp_f32 %s, %s" % (v(tmp+r), v(tmp+r)))
        A("s_nop 0")
        for h in range(2):
            x = acc + q + 2*h; t = tmp + 2*h
            A("v_pk_mul_f32 %s, %s, %s" % (v(x, 2), v(x, 2), v(t, 2)))

OPT = {}
def mlp1_body(A, L, NSLOT, kid=2, xcdrows=False, sc1=False):
    A("""
    s_load_dwordx4 s[4:7], s[0:1], %d
    s_load_dwordx2 s[10:11], s[0:1], %d
    v_lshrrev_b32 v1, 6, v0
    v_and_b32 v0, 63, v0
    s_and_b32 s3, s2, 7
    v_readfirstlane_b32 s12, v1
    s_lshr_b32 s15, s2, 3
    """ % (KA_W1, KA_WS))
    if xcdrows:
        A("""
        s_lshl_b32 s13, s3, 1
        s_and_b32 s24, s15, 1
        s_add_u32 s13, s13, s24
        s_lshr_b32 s14, s15, 1
        """)
    else:
        A("""
        s_and_b32 s13, s3, 3
        s_lshl_b32 s13, s13, 2
        s_and_b32 s24, s15, 3
        s_add_u32 s13, s13, s24
        s_lshr_b32 s14, s3, 2
        s_lshl_b32 s14, s14, 3
        s_lshr_b32 s24, s15, 2
        s_add_u32 s14, s14, s24
        """)
    stamp(A, 0)
    A("s_cmp_ge_u32 s12, 4")
    A("s_cbranch_scc1 %s" % L("loader"))
    NB = (NSLOT + 1)//2
    XA = 2
    WA = XA + 4*NB
    assert WA + NB <= 12
    ACC = 16
    FR = 64
    TMP = 120
    A("""
    v_and_b32 v14, 31, v0
    v_lshrrev_b32 v15, 5, v0
    v_lshrrev_b32 v16, 1, v14
    v_and_b32 v16, 7, v16
    v_xor_b32 v16, v15, v16
    s_lshl_b32 s26, s12, 12
    v_lshlrev_b32 v17, 7, v14
    v_add_u32 v17, s26, v17
    """)
    for st in range(4):
        A("v_xor_b32 v18, %d, v16" % (2*st))
        A("v_lshl_add_u32 %s, v18, 4, v17" % v(XA+st))
        for b in range(1, NB):
            A("v_add_u32 %s, %d, %s" % (v(XA+4*b+st), 2*SLOT*b, v(XA+st)))
    cm = 0
    for cg, x in enumerate(CMAP): cm |= x << (4*cg)
    A("""
    v_lshrrev_b32 v18, 4, v0
    v_and_b32 v19, 15, v0
    v_and_b32 v20, 1, v18
    v_lshlrev_b32 v20, 2, v20
    v_and_b32 v21, 3, v19
    v_add_u32 v20, v20, v21
    v_lshlrev_b32 v20, 2, v20
    s_mov_b32 s26, 0x%08x
    v_lshrrev_b32 v20, v20, s26
    v_and_b32 v20, 7, v20
    v_lshrrev_b32 v21, 2, v19
    v_lshrrev_b32 v22, 1, v18
    v_lshl_add_u32 v22, v22, 3, v21
    v_mul_u32_u24 v22, 192, v22
    v_lshl_add_u32 v22, v20, 3, v22
    v_add_u32 %s, %d, v22
    """ % (cm, v(WA), WOFF))
    for b in range(1, NB):
        A("v_add_u32 %s, %d, %s" % (v(WA+b), 2*SLOT*b, v(WA)))
    A("""
    s_mul_i32 s26, s14, 192
    v_lshlrev_b32 v12, 4, v15
    v_add_u32 v12, s26, v12
    s_waitcnt lgkmcnt(0)
    """)
    for t in range(3):
        A("global_load_dwordx4 %s, v12, s[6:7] offset:%d" % (v(FR+8*t, 4), 64*t))
        A("global_load_dwordx4 %s, v12, s[6:7] offset:%d" % (v(FR+8*t+4, 4), 64*t + 32))
    A("s_waitcnt vmcnt(0)")
    for t in range(3):
        for q in range(8):
            A("v_lshlrev_b32 %s, 16, %s" % (v(ACC+16*t+2*q), v(FR+8*t+q)))
            A("v_and_b32 %s, 0xffff0000, %s" % (v(ACC+16*t+2*q+1), v(FR+8*t+q)))
    def fr(p, j, which):
        return FR + (p % 2)*32 + j*16 + which*4
    def reads(p):
        out = []
        c = p // 2; slot = c % NSLOT; b = slot // 2; so = (slot % 2)*SLOT
        for j in range(2):
            st = (p % 2)*2 + j
            out.append("ds_read_b128 %s, %s offset:%d" % (v(fr(p, j, 0), 4), v(XA+4*b+st), so))
            for t in range(3):
                for u in range(2):
                    out.append("ds_read_b64_tr_b16 %s, %s offset:%d" % (v(fr(p, j, 1+t)+2*u, 2), v(WA+b), so + (16*st + 4*u)*192 + t*64))
        return out
    def mfmas(p):
        out = []
        for j in range(2):
            for t in range(3):
                acc = ACC + 16*t
                out.append("v_mfma_f32_32x32x16_bf16 %s, %s, %s, %s" % (v(acc, 16), v(fr(p, j, 1+t), 4), v(fr(p, j, 0), 4), v(acc, 16)))
        return out
    A("s_barrier")
    stamp(A, 1)
    for r in reads(0): A(r)
    NP = 2*NCH
    for p in range(NP):
        A("s_waitcnt lgkmcnt(0)")
        m = mfmas(p)
        rd = reads(p+1) if p+1 < NP else []
        if OPT.get("nocomp"):
            if p % 2 == 1 and p+1 < NP: A("s_barrier")
            continue
        A(m[0])
        if p % 2 == 1 and p+1 < NP:
            A("s_barrier")
        k = 0
        for mi in range(1, 6):
            for _ in range(4):
                if k < len(rd) and mi <= 4:
                    A(rd[k]); k += 1
            A(m[mi])
    A("s_nop 15")
    stamp(A, 2)
    A("""
    s_mov_b32 s28, %s
    s_mov_b32 s29, %s
    s_mov_b32 s30, 1.0
    s_mov_b32 s31, 1.0
    v_mov_b32 v118, %s
    v_mov_b32 v119, %s
    s_lshl_b32 s26, s13, 7
    s_lshl_b32 s27, s12, 5
    s_add_u32 s26, s26, s27
    v_add_u32 v12, s26, v14
    s_movk_i32 s27, 3072
    v_mul_lo_u32 v12, v12, s27
    s_mul_i32 s26, s14, 192
    s_add_u32 s26, s26, 0x%x
    v_lshlrev_b32 v13, 4, v15
    v_add3_u32 v12, v12, v13, s26
    """ % (f32(C1), f32(C1), f32(C0), f32(C0), WS_H))
    for t in range(3):
        acc = ACC + 16*t
        gelu_pairs(A, acc, 16, TMP, 28, 118, 30)
        for q in range(8):
            A("v_cvt_pk_bf16_f32 %s, %s, %s" % (v(FR+8*t+q), v(acc+2*q), v(acc+2*q+1)))
        A("global_store_dwordx4 v12, %s, s[10:11] offset:%d%s" % (v(FR+8*t, 4), 64*t, " sc1" if sc1 else ""))
        A("global_store_dwordx4 v12, %s, s[10:11] offset:%d%s" % (v(FR+8*t+4, 4), 64*t + 32, " sc1" if sc1 else ""))
    if common.STAMPS:
        A("s_waitcnt vmcnt(0)")
    stamp(A, 3)
    stamp_flush(A, kid, 4)
    A("s_branch %s" % L("mlp1_done"))
    A.label(L("loader"))
    A("""
    s_sub_u32 s12, s12, 4
    s_waitcnt lgkmcnt(0)
    s_add_u32 s16, s10, 0x%x
    s_addc_u32 s17, s11, 0
    s_mov_b32 s18, %d
    s_mov_b32 s19, 0x20000
    s_mov_b32 s20, s4
    s_mov_b32 s21, s5
    s_mov_b32 s22, %d
    s_mov_b32 s23, 0x20000
    v_lshrrev_b32 v14, 3, v0
    v_mul_u32_u24 v14, 1280, v14
    v_lshrrev_b32 v15, 4, v0
    v_and_b32 v21, 7, v0
    """ % (WS_Y, S_*D_*2, D_*F_*2))
    for j in range(4):
        A("v_add_u32 v22, %d, v15" % (4*j))
        A("v_and_b32 v22, 7, v22")
        A("v_xor_b32 v22, v21, v22")
        A("v_lshl_add_u32 %s, v22, 4, v14" % v(2+j))
        if j:
            A("v_add_u32 %s, %d, %s" % (v(2+j), j*(10240-1024), v(2+j)))
    A("s_mul_i32 s26, s12, 192")
    A("s_mov_b32 s27, 43691")
    for j in range(3):
        A("s_add_u32 s28, s26, %d" % (64*j))
        A("v_add_u32 v21, s28, v0")
        A("v_mul_lo_u32 v22, v21, s27")
        A("v_lshrrev_b32 v22, 19, v22")
        A("v_mul_u32_u24 v23, 12, v22")
        A("v_sub_u32 v21, v21, v23")
        A("v_mul_u32_u24 v22, 3072, v22")
        A("v_lshl_add_u32 %s, v21, 4, v22" % v(6+j))
        if j:
            A("v_subrev_u32 %s, %d, %s" % (v(6+j), 1024*j, v(6+j)))
    A("""
    s_lshl_b32 s30, s13, 7
    s_lshl_b32 s26, s12, 5
    s_add_u32 s30, s30, s26
    s_mul_i32 s30, s30, 1280
    s_mul_i32 s31, s14, 192
    s_lshl_b32 s32, s12, 12
    s_mul_i32 s33, s12, 3072
    """)
    def issue(c):
        if OPT.get("nodma"): return
        slot = c % NSLOT
        A("s_add_u32 m0, s32, %d" % (slot*SLOT))
        A("s_nop 0")
        for j in range(4):
            A("buffer_load_dwordx4 %s, s[16:19], s30 offen offset:%d lds" % (v(2+j), 1024*j))
        A("s_add_u32 m0, s33, %d" % (slot*SLOT + WOFF))
        A("s_add_u32 s30, s30, 128")
        for j in range(3):
            A("buffer_load_dwordx4 %s, s[20:23], s31 offen offset:%d lds" % (v(6+j), 1024*j))
        A("s_add_u32 s31, s31, %d" % (64*3072))
    loader_loop(A, issue, NCH, NSLOT, 7)
    A.label(L("mlp1_done"))

def gen_mlp1(A, name="mlp1_kernel"):
    L = lambda x: "%s_%s" % (name, x)
    A.l.append(kernel_header(name))
    A("s_cmp_ge_u32 s2, 256")
    A("s_cbranch_scc1 %s" % L("exit"))
    NSLOT = 4
    mlp1_body(A, L, NSLOT)
    A.label(L("exit"))
    A("s_endpgm")
    return dict(name=name, vgpr=128, sgpr=102, grid=256, block=512, lds=NSLOT*SLOT)
if __name__ == "__main__":
    check_conflicts()
```

```python
from common import *
import common
LDS_FLAG = 3*CHUNK
def dsel(n): return n if n <= 20 else 21
def check_conflicts():
    for tile in range(2):
        for m2 in range(2):
            ad = [OFF_V + tile*VT + m2*2*VB + (l >> 5)*VB + dsel(l & 31)*16 for l in range(64)]
            print("attn V", tile, m2, conflicts(ad, 16))

QLO = (8, 16); QHI = (12, 20)
KLO, KHI, VF0, VF1, PP = 24, 28, 32, 36, 40
OO = (48, 64)
S0, S1 = 80, 96
T0 = 112
AKLO, AKHI, AV0, AV1 = 2, 3, 4, 5
OPT = {}

def mf(d, a_, b_, c):
    return "v_mfma_f32_32x32x16_bf16 %s, %s, %s, %s" % (v(d, 16), v(a_, 4), v(b_, 4), c if isinstance(c, str) else v(c, 16))

def attn_body(A, L, sc1=True, wait_kv=None):
    SC = " sc1" if sc1 else ""
    A("""
    s_mov_b32 s12, s97
    s_and_b32 s13, s96, 7
    s_lshr_b32 s14, s96, 3
    s_and_b32 s14, s14, 3
    s_lshl_b32 s14, s14, 3
    s_add_u32 s13, s13, s14
    s_lshr_b32 s14, s96, 5
    v_lshlrev_b32 v1, 4, v0
    """)
    A("""
    s_and_b32 s20, s12, 3
    s_lshr_b32 s21, s12, 2
    s_lshl_b32 s15, s14, 3
    s_lshl_b32 s22, s20, 1
    s_add_u32 s15, s15, s22
    s_lshl_b32 s24, s12, 10
    s_add_u32 s25, s24, 8192
    s_add_u32 s26, s24, 16384
    s_cmp_lt_u32 s12, 5
    s_cselect_b32 s26, s26, s25
    s_mul_i32 s27, s13, %d
    s_add_u32 s16, s10, s27
    s_addc_u32 s17, s11, 0
    s_mov_b32 s18, %d
    s_mov_b32 s19, 0x20000
    """ % (HEADKV, HEADKV))
    def dma(goff, loff):
        for t, sj in enumerate(("s24", "s25", "s26")):
            A("s_add_u32 m0, %s, %s" % (sj, loff))
            A("s_add_u32 s28, %s, %s" % (sj, goff))
            A("buffer_load_dwordx4 v1, s[16:19], s28 offen%s lds" % SC)
    if wait_kv: wait_kv(A)
    A("""
    s_lshl_b32 s27, s13, 16
    s_lshl_b32 s28, s15, 10
    s_add_u32 s27, s27, s28
    s_add_u32 s27, s27, 0x%x
    v_add_u32 v6, s27, v1
    global_load_dwordx4 %s, v6, s[10:11]SCX
    global_load_dwordx4 %s, v6, s[10:11] offset:1024SCX
    s_lshl_b32 s27, s13, 14
    s_lshl_b32 s28, s15, 8
    s_add_u32 s27, s27, s28
    s_add_u32 s27, s27, 0x%x
    v_and_b32 v7, 31, v0
    v_lshl_add_u32 v6, v7, 1, s27
    """.replace("SCX", SC) % (WS_QLO, v(QLO[0], 4), v(QLO[1], 4), WS_QHI))
    for b in range(2):
        for d in range(4):
            A("global_load_ushort %s, v6, s[10:11] offset:%d%s" % (v(T0+4*b+d), 256*b + 64*d, SC))
    A("s_mov_b32 s35, 0")
    A("v_mov_b32 v7, 0")
    A("v_mov_b32 v6, %d" % LDS_FLAG)
    A("ds_write_b32 v6, v7")
    A.label(L("restart"))
    dma("0", "0")
    dma("%d" % CHUNK, "%d" % CHUNK)
    def addrs(kh_reg):
        A("""
        s_lshl_b32 s29, %s, 12
        v_add_u32 v2, s29, v1
        s_lshl_b32 s29, %s, 10
        s_add_u32 s29, s29, %d
        v_and_b32 v6, 15, v0
        v_lshrrev_b32 v3, 2, v6
        v_lshlrev_b32 v3, 6, v3
        v_bfe_u32 v6, v0, 4, 1
        v_lshl_add_u32 v3, v6, 5, v3
        v_and_b32 v6, 3, v0
        v_lshl_add_u32 v3, v6, 3, v3
        v_add_u32 v3, s29, v3
        s_mul_i32 s29, %s, %d
        s_add_u32 s29, s29, %d
        v_and_b32 v7, 31, v0
        v_min_u32 v4, 21, v7
        v_lshrrev_b32 v5, 5, v0
        v_lshlrev_b32 v4, 4, v4
        v_mul_u32_u24 v5, %d, v5
        v_add3_u32 v4, v4, v5, s29
        v_mov_b32 v5, v4
        """ % (kh_reg, kh_reg, OFF_KHI, kh_reg, 4*VT, OFF_V, VB))
    A("s_mov_b32 s36, 0")
    addrs("s36")
    A("v_mov_b32 %s, 0x3f803f80" % v(KHI+2))
    A("v_mov_b32 %s, 0x00003f80" % v(KHI+3))
    for b in range(2):
        for r in range(16):
            A("v_mov_b32 %s, 0" % v(OO[b]+r))
    for r in range(4, 8):
        A("v_mov_b32 %s, 0" % v(PP+r))
    A("""
    s_mov_b32 s30, 0
    s_mov_b32 s31, %d
    s_mov_b32 s32, %d
    s_mov_b32 s33, 0
    s_mov_b32 s38, 0x%x
    s_mov_b32 s39, %d
    """ % (2*CHUNK, 2*CHUNK, (-2*CHUNK) & 0xffffffff, CHUNK))
    A("s_cmp_lg_u32 s35, 0")
    A("s_cbranch_scc1 %s" % L("second"))
    A("s_waitcnt vmcnt(6)")
    A("v_cmp_gt_u32 vcc, 32, v0")
    for b in range(2):
        A("v_lshl_or_b32 %s, %s, 16, %s" % (v(QHI[b]), v(T0+4*b+1), v(T0+4*b)))
        A("v_lshl_or_b32 %s, %s, 16, %s" % (v(QHI[b]+1), v(T0+4*b+3), v(T0+4*b+2)))
        A("v_cndmask_b32 %s, 0, %s, vcc" % (v(QHI[b]), v(QHI[b])))
        A("v_cndmask_b32 %s, 0, %s, vcc" % (v(QHI[b]+1), v(QHI[b]+1)))
        A("v_mov_b32 %s, 0" % v(QHI[b]+2))
        A("v_mov_b32 %s, 0" % v(QHI[b]+3))
    A.label(L("second"))
    A("s_waitcnt vmcnt(3) lgkmcnt(0)")
    A("s_barrier")
    def rowmax(dst, src):
        A("v_max3_f32 %s, %s, %s, %s" % (v(dst), v(src), v(src+1), v(src+2)))
        for q in range(3, 15, 2):
            A("v_max3_f32 %s, %s, %s, %s" % (v(dst), v(dst), v(src+q), v(src+q+1)))
        A("v_max_f32 %s, %s, %s" % (v(dst), v(dst), v(src+15)))
    def set_c(m, b):
        q2, q3 = QHI[b]+2, QHI[b]+3
        t1, t2, t3, t4 = T0+8, T0+9, T0+10, T0+11
        A("""
        v_mov_b32 v{t1}, v{m}
        s_nop 1
        v_permlane32_swap_b32 v{m}, v{t1}
        s_nop 0
        v_max_f32 v{m}, v{m}, v{t1}
        v_sub_f32 v{m}, 0, v{m}
        v_cvt_pk_bf16_f32 v{t1}, v{m}, v{m}
        v_lshlrev_b32 v{t1}, 16, v{t1}
        v_sub_f32 v{t2}, v{m}, v{t1}
        v_cvt_pk_bf16_f32 v{t3}, v{t2}, v{t2}
        v_lshlrev_b32 v{t3}, 16, v{t3}
        v_sub_f32 v{t2}, v{t2}, v{t3}
        v_cmp_gt_u32 vcc, 32, v0
        v_cvt_pk_bf16_f32 v{q2}, v{t1}, v{t3}
        v_mov_b32 v{t4}, 0
        v_cvt_pk_bf16_f32 v{q3}, v{t2}, v{t4}
        v_cndmask_b32 v{q2}, 0, v{q2}, vcc
        v_cndmask_b32 v{q3}, 0, v{q3}, vcc
        """.format(m=m, t1=t1, t2=t2, t3=t3, t4=t4, q2=q2, q3=q3))
    A("s_cmp_lg_u32 s35, 0")
    A("s_cbranch_scc1 %s" % L("havec"))
    A("ds_read_b128 %s, v2" % v(KLO, 4))
    A("ds_read_b64_tr_b16 %s, v3" % v(KHI, 2))
    A("s_waitcnt lgkmcnt(0)")
    A(mf(S0, KLO, QLO[0], "0")); A(mf(S1, KLO, QLO[1], "0"))
    A(mf(S0, KHI, QHI[0], S0)); A(mf(S1, KHI, QHI[1], S1))
    A("s_nop 15")
    rowmax(T0, S0); rowmax(T0+1, S1)
    set_c(T0, 0); set_c(T0+1, 1)
    A.label(L("havec"))
    addrs("s21")
    A("ds_read_b128 %s, v2" % v(KLO, 4))
    A("ds_read_b64_tr_b16 %s, v3" % v(KHI, 2))
    A("ds_read_b128 %s, v5 offset:%d" % (v(VF1, 4), 2*VB))
    A("ds_read_b128 %s, v4" % v(VF0, 4))
    A("s_waitcnt lgkmcnt(0)")
    A(mf(S0, KLO, QLO[0], "0"))
    A(mf(S0, KHI, QHI[0], S0))
    A("s_nop 7")
    A("s_nop 3")
    if OPT.get("prio"):
        lab = A.new("pr")
        A("s_cmp_ge_u32 s12, 4")
        A("s_cbranch_scc0 %s" % lab)
        A("s_setprio 1")
        A.label(lab)
    stamp(A, 3)
    A(".p2align 6")
    A.label(L("loop"))
    def E(S, q):
        for r in range(4):
            if OPT.get("movexp"):
                A("v_and_b32 %s, 0x3fffffff, %s" % (v(S+4*q+r), v(S+4*q+r)))
                A("s_nop 0") if OPT["movexp"] == 2 else A("v_and_b32 %s, 0x3fffffff, %s" % (v(S+4*q+r), v(S+4*q+r)))
            else:
                A("v_exp_f32 %s, %s" % (v(S+4*q+r), v(S+4*q+r)))
        if OPT.get("perm"):
            A("v_perm_b32 %s, %s, %s, s60" % (v(PP+2*q), v(S+4*q+1), v(S+4*q)))
            A("v_perm_b32 %s, %s, %s, s60" % (v(PP+2*q+1), v(S+4*q+3), v(S+4*q+2)))
        else:
            A("v_cvt_pk_bf16_f32 %s, %s, %s" % (v(PP+2*q), v(S+4*q), v(S+4*q+1)))
            A("v_cvt_pk_bf16_f32 %s, %s, %s" % (v(PP+2*q+1), v(S+4*q+2), v(S+4*q+3)))
    def RD(x):
        if not OPT.get("nolds"): A(x)
    def WT(x):
        if not (OPT.get("nolds") or OPT.get("nowait")): A(x)
    for t in range(4):
        if t == 3:
            if not OPT.get("nobar"):
                A("s_waitcnt vmcnt(0)")
                A("s_barrier")
            if not OPT.get("nodma"):
                dma("s31", "s32")
            A("s_add_u32 s31, s31, %d" % CHUNK)
            A("s_add_u32 s32, s32, %d" % CHUNK)
            A("s_cmp_eq_u32 s32, %d" % (3*CHUNK))
            A("s_cselect_b32 s32, 0, s32")
            A("s_add_u32 s33, s33, 1")
            A("s_cmp_eq_u32 s33, 3")
            A("s_cselect_b32 s33, 0, s33")
            A("s_cselect_b32 s34, s38, s39")
            A("v_add_u32 v2, s34, v2")
            A("v_add_u32 v3, s34, v3")
        kt = (t + 1) % 4
        lad = OPT.get("ladder")
        if lad and (t == 0 or lad[2*t] != lad[2*t-1] ): A("s_setprio %d" % lad[2*t])
        A(mf(S1, KLO, QLO[1], "0"))
        RD("ds_read_b128 %s, v2 offset:%d" % (v(KLO, 4), kt*1024))
        E(S0, 0)
        if not OPT.get("noqk2"): A(mf(S1, KHI, QHI[1], S1))
        RD("ds_read_b64_tr_b16 %s, v3 offset:%d" % (v(KHI, 2), kt*256))
        E(S0, 1)
        A(mf(OO[1], VF1, PP+4, OO[1]))
        RD("ds_read_b128 %s, v5 offset:%d" % (v(VF1, 4), t*VT + 2*VB))
        if t == 3:
            A("v_add_u32 v5, s34, v5")
        E(S0, 2)
        WT("s_waitcnt lgkmcnt(3)")
        A(mf(OO[0], VF0, PP, OO[0]))
        E(S0, 3)
        WT("s_waitcnt lgkmcnt(0)")
        if lad and lad[2*t+1] != lad[2*t]: A("s_setprio %d" % lad[2*t+1])
        A(mf(S0, KLO, QLO[0], "0"))
        E(S1, 0)
        if not OPT.get("noqk2"): A(mf(S0, KHI, QHI[0], S0))
        E(S1, 1)
        A(mf(OO[0], VF1, PP+4, OO[0]))
        E(S1, 2)
        A(mf(OO[1], VF0, PP, OO[1]))
        if t == 3:
            A("v_add_u32 v4, s34, v4")
        RD("ds_read_b128 %s, v4 offset:%d" % (v(VF0, 4), kt*VT))
        E(S1, 3)
    A("s_add_u32 s30, s30, 1")
    A("s_cmp_lt_u32 s30, 8")
    A("s_cbranch_scc1 %s" % L("loop"))
    A(mf(OO[1], VF1, PP+4, OO[1]))
    stamp(A, 4)
    A("s_waitcnt vmcnt(0) lgkmcnt(0)")
    A("s_barrier")
    A("""
    s_lshl_b32 s27, s12, 12
    v_add_u32 v6, s27, v1
    s_xor_b32 s27, s12, 4
    s_lshl_b32 s27, s27, 12
    v_add_u32 v7, s27, v1
    s_cmp_eq_u32 s21, 0
    s_nop 7
    s_cbranch_scc1 %s
    """ % L("give1"))
    for give, keep, lab in ((0, 1, None), (1, 0, "give1")):
        if lab: A.label(L(lab))
        for q in range(3):
            A("ds_write_b128 v6, %s offset:%d" % (v(OO[give]+4*q, 4), 1024*q))
        A("s_waitcnt lgkmcnt(0)")
        A("s_barrier")
        for q in range(3):
            A("ds_read_b128 %s, v7 offset:%d" % (v(S0+4*q, 4), 1024*q))
        A("s_waitcnt lgkmcnt(0)")
        for r in range(12):
            A("v_add_f32 %s, %s, %s" % (v(S0+r), v(S0+r), v(OO[keep]+r)))
        if lab is None:
            A("s_branch %s" % L("fin"))
    A.label(L("fin"))
    OF = S0
    A("""
    s_add_u32 s27, s15, s21
    s_lshl_b32 s27, s27, 5
    v_and_b32 v7, 31, v0
    v_add_u32 v6, s27, v7
    v_mul_u32_u24 v6, 1280, v6
    s_mul_i32 s27, s13, 40
    s_add_u32 s27, s27, 0x%x
    v_lshrrev_b32 v7, 5, v0
    v_lshlrev_b32 v7, 3, v7
    v_add3_u32 v6, v6, v7, s27
    v_mov_b32 v%d, %s
    v_mov_b32 v%d, %s
    s_nop 1
    v_permlane32_swap_b32 v%d, v%d
    s_nop 0
    v_rcp_f32 v%d, v%d
    """ % (WS_O, T0, v(OF+8), T0+1, v(OF+8), T0, T0+1, T0+2, T0+1))
    A("v_add_f32 %s, abs(%s), abs(%s)" % (v(T0+3), v(OF), v(OF+1)))
    for r in range(2, 12):
        A("v_add_f32 %s, %s, abs(%s)" % (v(T0+3), v(T0+3), v(OF+r)))
    for r in range(12):
        A("v_mul_f32 %s, %s, %s" % (v(OF+r), v(T0+2), v(OF+r)))
    for q in range(6):
        A("v_cvt_pk_bf16_f32 %s, %s, %s" % (v(PP+q), v(OF+2*q), v(OF+2*q+1)))
    A("global_store_dwordx2 v6, %s, s[10:11]%s" % (v(PP, 2), SC))
    A("global_store_dwordx2 v6, %s, s[10:11] offset:16%s" % (v(PP+2, 2), SC))
    A("v_cmp_gt_u32 vcc, 32, v0")
    A("s_and_saveexec_b64 s[40:41], vcc")
    A("global_store_dwordx2 v6, %s, s[10:11] offset:32%s" % (v(PP+4, 2), SC))
    A("s_mov_b64 exec, s[40:41]")
    A("s_cmp_lg_u32 s35, 0")
    A("s_cbranch_scc1 %s" % L("done"))
    A("""
    v_mov_b32 v7, 0x7f800000
    v_cmp_nlt_f32 vcc, %s, v7
    v_mov_b32 v6, %d
    v_mov_b32 v7, 1
    s_and_saveexec_b64 s[40:41], vcc
    s_cbranch_execz %s
    ds_write_b32 v6, v7
    """ % (v(T0+3), LDS_FLAG, L("noflag")))
    A.label(L("noflag"))
    A("""
    s_mov_b64 exec, s[40:41]
    s_waitcnt lgkmcnt(0)
    s_barrier
    ds_read_b32 v7, v6
    s_waitcnt lgkmcnt(0)
    v_readfirstlane_b32 s36, v7
    s_nop 3
    s_cmp_eq_u32 s36, 0
    s_cbranch_scc1 %s
    """ % L("done"))
    A("s_mov_b32 s35, 1")
    for b in range(2):
        A("v_mov_b32 %s, 0" % v(QHI[b]+2))
        A("v_mov_b32 %s, 0" % v(QHI[b]+3))
        A("v_mov_b32 %s, 0xff800000" % v(T0+b))
    A("s_mov_b32 s30, 0")
    A("s_mov_b32 s31, 0")
    A("s_waitcnt vmcnt(0)")
    A.label(L("fb_chunk"))
    A("s_barrier")
    dma("s31", "0")
    A("s_waitcnt vmcnt(0)")
    A("s_barrier")
    A("s_mov_b32 s36, 0")
    addrs("s36")
    A("s_mov_b32 s37, 0")
    A.label(L("fb_tile"))
    A("ds_read_b128 %s, v2" % v(KLO, 4))
    A("ds_read_b64_tr_b16 %s, v3" % v(KHI, 2))
    A("v_add_u32 v2, 1024, v2")
    A("v_add_u32 v3, 256, v3")
    A("s_waitcnt lgkmcnt(0)")
    A(mf(S0, KLO, QLO[0], "0")); A(mf(S1, KLO, QLO[1], "0"))
    A(mf(S0, KHI, QHI[0], S0)); A(mf(S1, KHI, QHI[1], S1))
    A("s_nop 15")
    rowmax(T0+2, S0); rowmax(T0+3, S1)
    A("v_max_f32 %s, %s, %s" % (v(T0), v(T0), v(T0+2)))
    A("v_max_f32 %s, %s, %s" % (v(T0+1), v(T0+1), v(T0+3)))
    A("s_add_u32 s37, s37, 1")
    A("s_cmp_lt_u32 s37, 8")
    A("s_cbranch_scc1 %s" % L("fb_tile"))
    A("s_add_u32 s31, s31, %d" % CHUNK)
    A("s_add_u32 s30, s30, 1")
    A("s_cmp_lt_u32 s30, 8")
    A("s_cbranch_scc1 %s" % L("fb_chunk"))
    set_c(T0, 0); set_c(T0+1, 1)
    A("s_barrier")
    A("s_branch %s" % L("restart"))
    A.label(L("done"))
```

```python
from common import *
import common, pqkv, pattn, pmlp1, pg64
OPT = {}
def entry(A, L, name):
    A.l.append(kernel_header(name))
    A("s_cmp_ge_u32 s2, 512")
    A("s_cbranch_scc1 %s" % L("exit"))
    A("""
    s_load_dwordx2 s[10:11], s[0:1], %d
    v_lshrrev_b32 v1, 6, v0
    v_and_b32 v0, 63, v0
    s_and_b32 s96, s2, 255
    v_readfirstlane_b32 s97, v1
    s_nop 3
    """ % KA_WS)
    stamp_init(A)
    stamp(A, 0)

def ln_part(A, L, signal):
    A("s_load_dwordx2 s[4:5], s[0:1], %d" % KA_X)
    A("s_load_dwordx2 s[8:9], s[0:1], %d" % KA_GW)
    A("s_waitcnt lgkmcnt(0)")
    unpack = pqkv.ln_body(A, L)
    A("s_waitcnt vmcnt(0)")
    pqkv.ln_finish(A, unpack)
    if signal:
        A("s_waitcnt vmcnt(0)")
        A("s_barrier")
        lab = A.new("lnsig")
        A("s_cmp_lg_u32 s97, 0")
        A("s_cbranch_scc1 %s" % lab)
        A("s_lshr_b32 s24, s96, 4")
        A("s_and_b32 s25, s96, 15")
        flag_signal(A, FL_LN, "s24", "s25")
        A.label(lab)

def qkv_part(A, L, signal):
    A("s_load_dwordx4 s[4:7], s[0:1], %d" % KA_X)
    A("s_waitcnt lgkmcnt(0)")
    pqkv.qkv_body(A, L)
    if signal:
        A("s_waitcnt vmcnt(0)")
        A("s_barrier")
        lab = A.new("qsig")
        A("s_cmp_lg_u32 s97, 4")
        A("s_cbranch_scc1 %s" % lab)
        flag_signal(A, FL_QKV, "s14", "s13")
        A.label(lab)

def attn_part(A, L, wait):
    def wait_kv(A):
        lab = A.new("kvw")
        A("s_cmp_lg_u32 s97, 0")
        A("s_cbranch_scc1 %s" % lab)
        A("s_lshr_b32 s27, s13, 1")
        flag_wait(A, FL_QKV, "s27", 16)
        A.label(lab)
        A("s_barrier")
        stamp(A, 2)
    pattn.attn_body(A, L, wait_kv=wait_kv if wait else None)
    stamp(A, 5)
    A("s_waitcnt vmcnt(0)")
    A("s_barrier")
    lab = A.new("osig")
    A("s_cmp_lg_u32 s97, 0")
    A("s_cbranch_scc1 %s" % lab)
    flag_signal(A, FL_O, "s14", "s13")
    A.label(lab)
    stamp(A, 6)

def mlp_part(A, L, wait_ln):
    P = OPT.get("gprio", 3)
    A("s_load_dwordx4 s[4:7], s[0:1], %d" % KA_W1)
    A("s_setprio %d" % P)
    def head(A):
        if wait_ln:
            lab = A.new("lnw")
            A("s_cmp_lg_u32 s97, 4")
            A("s_cbranch_scc1 %s" % lab)
            flag_wait(A, FL_LN, "s13", 16)
            A.label(lab)
    if wait_ln:
        pmlp1.mlp1_map(A)
        head(A)
        A("s_barrier")
    A("s_waitcnt lgkmcnt(0)")
    LG = lambda x: L("m1_" + x)
    pmlp1.mlp1_body(A, LG, 5, prio=P)
    A("s_waitcnt vmcnt(0)")
    A("s_barrier")
    stamp(A, 5)
    lab = A.new("hsig")
    A("s_cmp_lg_u32 s97, 4")
    A("s_cbranch_scc1 %s" % lab)
    flag_signal(A, FL_H, "s13", "s14")
    pg64.g64_map(A)
    A("s_lshr_b32 s27, s13, 1")
    flag_wait(A, FL_H, "s27", 16)
    A.label(lab)
    A("s_barrier")
    def wait_o(A):
        A("s_lshr_b32 s27, s13, 2")
        flag_wait(A, FL_O, "s27", 32)
    LG2 = lambda x: L("g2_" + x)
    pg64.g64_body(A, LG2, prio=P, wait_o=wait_o)

def nonce_part(A, L, sync_wave):
    lab = A.new("nomake")
    A("s_waitcnt lgkmcnt(0)")
    A("s_cmp_lg_u32 s2, 0")
    A("s_cbranch_scc1 %s" % lab)
    A("s_cmp_lg_u32 s97, 0")
    A("s_cbranch_scc1 %s" % lab)
    nonce_make(A)
    A.label(lab)
def nonce_fetch(A, who):
    lab = A.new("nofetch")
    A("s_cmp_lg_u32 s97, %d" % who)
    A("s_cbranch_scc1 %s" % lab)
    nonce_get(A)
    A.label(lab)

def gen_p1(A, name="p1_kernel"):
    L = lambda x: "%s_%s" % (name, x)
    entry(A, L, name)
    A("s_waitcnt lgkmcnt(0)")
    A("s_cmp_ge_u32 s2, 256")
    A("s_cbranch_scc1 %s" % L("grole"))
    ln_part(A, L, False)
    stamp(A, 1)
    stamp_flush(A, 0)
    A("s_endpgm")
    A.label(L("grole"))
    qkv_part(A, L, False)
    if common.STAMPS: A("s_waitcnt vmcnt(0)")
    stamp(A, 3)
    stamp_flush(A, 1)
    A.label(L("exit"))
    A("s_endpgm")
    return dict(name=name, vgpr=128, sgpr=102, grid=512, block=512, lds=81920)

def gen_p2(A, name="p2_kernel"):
    L = lambda x: "%s_%s" % (name, x)
    entry(A, L, name)
    nonce_part(A, L, 0)
    A("s_cmp_ge_u32 s2, 256")
    A("s_cbranch_scc1 %s" % L("grole"))
    nonce_fetch(A, 0)
    attn_part(A, L, False)
    stamp_flush(A, 2)
    A("s_endpgm")
    A.label(L("grole"))
    nonce_fetch(A, 4)
    mlp_part(A, L, False)
    stamp_flush(A, 3)
    A.label(L("exit"))
    A("s_endpgm")
    return dict(name=name, vgpr=128, sgpr=102, grid=512, block=512, lds=81920)

def gen_p(A, name="gated_mix__softmax_full_mha__mixer_channel_mlp__prompt_kernel"):
    L = lambda x: "pk_%s" % x
    entry(A, L, name)
    nonce_part(A, L, 0)
    A("s_cmp_ge_u32 s2, 256")
    A("s_cbranch_scc1 %s" % L("grole"))
    nonce_fetch(A, 0)
    ln_part(A, L, True)
    stamp(A, 1)
    attn_part(A, L, True)
    stamp_flush(A, 2)
    A("s_endpgm")
    A.label(L("grole"))
    nonce_fetch(A, 4)
    qkv_part(A, L, True)
    mlp_part(A, L, True)
    stamp_flush(A, 3)
    A.label(L("exit"))
    A("s_endpgm")
    return dict(name=name, vgpr=128, sgpr=102, grid=512, block=512, lds=81920)
```

```python
from common import *
import common
SLOT = 18432
WOFF = 8192
NSLOT = 4
OPT = {}
def g64_map(A):
    A("""
    s_and_b32 s3, s96, 7
    s_lshr_b32 s15, s96, 3
    s_lshl_b32 s13, s3, 2
    s_and_b32 s24, s15, 3
    s_add_u32 s13, s13, s24
    s_lshr_b32 s14, s15, 2
    """)
def g64_body(A, L, sc1=True, prio=0, wait_o=None, loader_mid=None):
    SC = " sc1" if sc1 else ""
    A("""
    s_load_dwordx4 s[4:7], s[0:1], %d
    s_load_dwordx2 s[8:9], s[0:1], %d
    s_load_dwordx2 s[38:39], s[0:1], %d
    s_mov_b32 s12, s97
    """ % (KA_W2, KA_WO, KA_OUT))
    g64_map(A)
    if prio: A("s_setprio %d" % prio)
    A("s_cmp_ge_u32 s12, 4")
    A("s_cbranch_scc1 %s" % L("g_loader"))
    NB = (NSLOT + 2)//3
    XA = 2; WA = XA + 2*NB
    ACC1, ACC2, FR = 32, 52, 72
    A("""
    v_and_b32 v14, 15, v0
    v_lshrrev_b32 v15, 4, v0
    v_lshrrev_b32 v16, 1, v14
    v_xor_b32 v16, v15, v16
    s_lshl_b32 s26, s12, 11
    v_lshlrev_b32 v17, 7, v14
    v_add_u32 v17, s26, v17
    """)
    for st in range(2):
        A("v_xor_b32 v18, %d, v16" % (4*st))
        A("v_lshl_add_u32 %s, v18, 4, v17" % v(XA+st))
        for b in range(1, NB):
            A("v_add_u32 %s, %d, %s" % (v(XA+2*b+st), 3*SLOT*b, v(XA+st)))
    A("""
    v_lshrrev_b32 v18, 1, v15
    v_lshlrev_b32 v18, 4, v18
    v_and_b32 v19, 1, v15
    v_lshl_add_u32 v18, v19, 2, v18
    v_lshrrev_b32 v19, 2, v14
    v_add_u32 v18, v18, v19
    v_mul_u32_u24 v18, 160, v18
    v_and_b32 v19, 3, v14
    v_lshl_add_u32 v18, v19, 3, v18
    v_add_u32 %s, %d, v18
    """ % (v(WA), WOFF))
    for b in range(1, NB):
        A("v_add_u32 %s, %d, %s" % (v(WA+b), 3*SLOT*b, v(WA)))
    A("""
    s_lshl_b32 s26, s13, 6
    s_lshl_b32 s27, s12, 4
    s_add_u32 s26, s26, s27
    v_add_u32 v20, s26, v14
    s_mul_i32 s27, s14, 80
    v_lshl_add_u32 v21, v15, 2, s27
    v_lshlrev_b32 v22, 2, v20
    v_add_u32 v22, 0x%x, v22
    v_lshlrev_b32 v24, 1, v21
    s_waitcnt lgkmcnt(0)
    global_load_dword v23, v22, s[10:11]%s
    """ % (WS_G, SC))
    for t in range(5):
        A("global_load_dwordx2 %s, v24, s[6:7] offset:%d" % (v(FR+2*t, 2), 32*t))
    A("s_waitcnt vmcnt(0)")
    for t in range(5):
        for q in range(2):
            A("v_lshlrev_b32 %s, 16, %s" % (v(ACC1+4*t+2*q), v(FR+2*t+q)))
            A("v_and_b32 %s, 0xffff0000, %s" % (v(ACC1+4*t+2*q+1), v(FR+2*t+q)))
    def fr(p, which): return FR + (p % 2)*24 + which*4
    def gemm(NCH, ACC, zero_init, st0):
        def reads(p):
            out = []
            c = p // 2; j = p % 2
            slot = c % NSLOT; b = slot // 3; so = (slot % 3)*SLOT
            out.append("ds_read_b128 %s, %s offset:%d" % (v(fr(p, 0), 4), v(XA+2*b+j), so))
            for t in range(5):
                for u in range(2):
                    out.append("ds_read_b64_tr_b16 %s, %s offset:%d" % (v(fr(p, 1+t)+2*u, 2), v(WA+b), so + (32*j + 8*u)*160 + t*32))
            return out
        def mfmas(p):
            return ["v_mfma_f32_16x16x32_bf16 %s, %s, %s, %s" % (v(ACC+4*t, 4), v(fr(p, 1+t), 4), v(fr(p, 0), 4), "0" if (zero_init and p == 0) else v(ACC+4*t, 4)) for t in range(5)]
        if prio: A("s_setprio %d" % OPT.get("loopprio", 0))
        A("s_barrier")
        stamp(A, st0)
        for r in reads(0): A(r)
        NP = 2*NCH
        for p in range(NP):
            A("s_waitcnt lgkmcnt(0)")
            if p % 2 == 1 and p+1 < NP:
                A("s_barrier")
            m = mfmas(p)
            rd = reads(p+1) if p+1 < NP else []
            k = 0
            for mi in range(5):
                A(m[mi])
                for _ in range(3):
                    if k < len(rd):
                        A(rd[k]); k += 1
    gemm(24, ACC1, False, 6)
    A("s_barrier")
    gemm(10, ACC2, True, 7)
    A("s_nop 7")
    if prio: A("s_setprio %d" % prio)
    stamp(A, 8)
    A("v_sub_f32 v22, 1.0, v23")
    A("v_mul_u32_u24 v24, 1280, v20")
    A("v_lshl_add_u32 v24, v21, 1, v24")
    for t in range(5):
        for r in range(4):
            A("v_mul_f32 %s, v22, %s" % (v(ACC1+4*t+r), v(ACC1+4*t+r)))
            A("v_fmac_f32 %s, v23, %s" % (v(ACC1+4*t+r), v(ACC2+4*t+r)))
        A("v_cvt_pk_bf16_f32 %s, %s, %s" % (v(FR+2*t), v(ACC1+4*t), v(ACC1+4*t+1)))
        A("v_cvt_pk_bf16_f32 %s, %s, %s" % (v(FR+2*t+1), v(ACC1+4*t+2), v(ACC1+4*t+3)))
        A("global_store_dwordx2 v24, %s, s[38:39] offset:%d" % (v(FR+2*t, 2), 32*t))
    A("s_branch %s" % L("g_done"))
    A.label(L("g_loader"))
    A("s_sub_u32 s12, s12, 4")
    A("s_waitcnt lgkmcnt(0)")
    A("""
    v_lshrrev_b32 v15, 4, v0
    v_and_b32 v21, 7, v0
    v_lshrrev_b32 v14, 3, v0
    """)
    for j in range(2):
        A("v_add_u32 v22, %d, v15" % (4*j))
        A("v_and_b32 v22, 7, v22")
        A("v_xor_b32 v22, v21, v22")
        A("v_lshlrev_b32 %s, 4, v22" % v(10+j))
    A("s_mov_b32 s27, 52429")
    for jj in range(3):
        A("s_add_u32 s28, s12, %d" % (4*jj))
        A("s_lshl_b32 s28, s28, 6")
        A("v_add_u32 v21, s28, v0")
        A("v_mul_lo_u32 v22, v21, s27")
        A("v_lshrrev_b32 v22, 19, v22")
        A("v_mul_u32_u24 v23, 10, v22")
        A("v_sub_u32 v21, v21, v23")
        A("v_and_b32 v23, 0x33, v22")
        A("v_and_b32 v24, 4, v22")
        A("v_lshl_or_b32 v23, v24, 1, v23")
        A("v_and_b32 v24, 8, v22")
        A("v_lshrrev_b32 v24, 1, v24")
        A("v_or_b32 v23, v23, v24")
        A("v_mul_u32_u24 v23, 1280, v23")
        A("v_lshl_add_u32 %s, v21, 4, v23" % v(6+jj))
    A("s_lshl_b32 s32, s12, 11")
    A("s_lshl_b32 s33, s12, 10")
    def setup(astride, aoff, asize, wreg, wsize):
        A("""
        s_add_u32 s16, s10, 0x%x
        s_addc_u32 s17, s11, 0
        s_mov_b32 s18, %d
        s_mov_b32 s19, 0x20000
        s_mov_b32 s20, s%d
        s_mov_b32 s21, s%d
        s_mov_b32 s22, %d
        s_mov_b32 s23, 0x20000
        s_movk_i32 s26, %d
        v_mul_lo_u32 v12, v14, s26
        v_add_u32 v2, v12, v10
        v_add_u32 v3, v12, v11
        v_add_u32 v3, %d, v3
        s_lshl_b32 s30, s13, 6
        s_lshl_b32 s26, s12, 4
        s_add_u32 s30, s30, s26
        s_mul_i32 s30, s30, %d
        s_mul_i32 s31, s14, 160
        """ % (aoff, asize, wreg, wreg+1, wsize, astride, 8*astride - 1024, astride))
    def mk_issue(nw):
        def issue(c):
            slot = c % NSLOT
            A("s_add_u32 m0, s32, %d" % (slot*SLOT))
            A("s_nop 0")
            for j in range(2):
                A("buffer_load_dwordx4 %s, s[16:19], s30 offen offset:%d%s lds" % (v(2+j), 1024*j, SC))
            A("s_add_u32 s30, s30, 128")
            for jj in range(nw):
                A("s_add_u32 m0, s33, %d" % (slot*SLOT + WOFF + 4096*jj))
                A("s_nop 0")
                A("buffer_load_dwordx4 %s, s[20:23], s31 offen lds" % v(6+jj))
            A("s_add_u32 s31, s31, %d" % (64*1280))
        return issue
    for var, nw, per in (("A", 3, 5), ("B", 2, 4)):
        if var == "A":
            A("s_cmp_lt_u32 s12, 2")
            A("s_cbranch_scc0 %s" % L("g_loaderB"))
        else:
            A.label(L("g_loaderB"))
        setup(3072, WS_H, S_*F_*2, 4, F_*D_*2)
        if prio: A("s_setprio 0")
        loader_loop(A, mk_issue(nw), 24, NSLOT, per)
        if prio: A("s_setprio %d" % prio)
        if var == "A":
            if loader_mid: loader_mid(A)
            lab = A.new("nosync")
            A("s_cmp_lg_u32 s12, 0")
            A("s_cbranch_scc1 %s" % lab)
            if wait_o: wait_o(A)
            A.label(lab)
        A("s_barrier")
        setup(1280, WS_O, S_*D_*2, 8, D_*D_*2)
        if prio: A("s_setprio 0")
        loader_loop(A, mk_issue(nw), 10, NSLOT, per)
        if var == "A":
            A("s_branch %s" % L("g_done"))
    A.label(L("g_done"))
```

```python
from common import *
import common
from kmlp1 import gelu_pairs, C0, C1, CMAP
SLOT = 14336
WOFF = 8192
NCH = 20
OPT = {}
def check_conflicts():
    for st in range(2):
        ad = []
        for l in range(64):
            r = l & 31; hh = l >> 5; g = (r >> 2) & 3
            ad.append(r*64 + (((hh ^ g) ^ (2*st)) << 4))
        print("mlp1b y step", st, conflicts(ad, 16))

def mlp1_map(A):
    A("""
    s_and_b32 s3, s96, 7
    s_lshr_b32 s15, s96, 3
    s_and_b32 s13, s3, 3
    s_lshl_b32 s13, s13, 2
    s_and_b32 s24, s15, 3
    s_add_u32 s13, s13, s24
    s_lshr_b32 s14, s3, 2
    s_lshl_b32 s14, s14, 3
    s_lshr_b32 s24, s15, 2
    s_add_u32 s14, s14, s24
    """)
def mlp1_body(A, L, NSLOT=5, sc1=True, prio=0, after_loader=None, loader_head=None):
    SC = " sc1" if sc1 else ""
    A("s_mov_b32 s12, s97")
    mlp1_map(A)
    if prio: A("s_setprio %d" % prio)
    A("s_cmp_ge_u32 s12, 4")
    A("s_cbranch_scc1 %s" % L("loader"))
    NB = (NSLOT + 3)//4
    XA = 2
    WA = XA + 2*NB
    assert WA + NB <= 12
    ACC = 16
    FR = 64
    TMP = 120
    A("""
    v_and_b32 v14, 31, v0
    v_lshrrev_b32 v15, 5, v0
    v_lshrrev_b32 v16, 2, v14
    v_and_b32 v16, 3, v16
    v_xor_b32 v16, v15, v16
    s_lshl_b32 s26, s12, 11
    v_lshlrev_b32 v17, 6, v14
    v_add_u32 v17, s26, v17
    """)
    for st in range(2):
        A("v_xor_b32 v18, %d, v16" % (2*st))
        A("v_lshl_add_u32 %s, v18, 4, v17" % v(XA+st))
        for b in range(1, NB):
            A("v_add_u32 %s, %d, %s" % (v(XA+2*b+st), 4*SLOT*b, v(XA+st)))
    cm = 0
    for cg, x in enumerate(CMAP): cm |= x << (4*cg)
    A("""
    v_lshrrev_b32 v18, 4, v0
    v_and_b32 v19, 15, v0
    v_and_b32 v20, 1, v18
    v_lshlrev_b32 v20, 2, v20
    v_and_b32 v21, 3, v19
    v_add_u32 v20, v20, v21
    v_lshlrev_b32 v20, 2, v20
    s_mov_b32 s26, 0x%08x
    v_lshrrev_b32 v20, v20, s26
    v_and_b32 v20, 7, v20
    v_lshrrev_b32 v21, 2, v19
    v_lshrrev_b32 v22, 1, v18
    v_lshl_add_u32 v22, v22, 3, v21
    v_mul_u32_u24 v22, 192, v22
    v_lshl_add_u32 v22, v20, 3, v22
    v_add_u32 %s, %d, v22
    """ % (cm, v(WA), WOFF))
    for b in range(1, NB):
        A("v_add_u32 %s, %d, %s" % (v(WA+b), 4*SLOT*b, v(WA)))
    A("""
    s_mul_i32 s26, s14, 192
    v_lshlrev_b32 v12, 4, v15
    v_add_u32 v12, s26, v12
    """)
    for t in range(3):
        A("global_load_dwordx4 %s, v12, s[6:7] offset:%d" % (v(FR+8*t, 4), 64*t))
        A("global_load_dwordx4 %s, v12, s[6:7] offset:%d" % (v(FR+8*t+4, 4), 64*t + 32))
    A("s_waitcnt vmcnt(0)")
    for t in range(3):
        for q in range(8):
            A("v_lshlrev_b32 %s, 16, %s" % (v(ACC+16*t+2*q), v(FR+8*t+q)))
            A("v_and_b32 %s, 0xffff0000, %s" % (v(ACC+16*t+2*q+1), v(FR+8*t+q)))
    def fr(p, j, which):
        return FR + (p % 2)*32 + j*16 + which*4
    def reads(c):
        out = []
        slot = c % NSLOT; b = slot // 4; so = (slot % 4)*SLOT
        for st in range(2):
            out.append("ds_read_b128 %s, %s offset:%d" % (v(fr(c, st, 0), 4), v(XA+2*b+st), so))
            for t in range(3):
                for u in range(2):
                    out.append("ds_read_b64_tr_b16 %s, %s offset:%d" % (v(fr(c, st, 1+t)+2*u, 2), v(WA+b), so + (16*st + 4*u)*192 + t*64))
        return out
    def mfmas(c):
        out = []
        for j in range(2):
            for t in range(3):
                acc = ACC + 16*t
                out.append("v_mfma_f32_32x32x16_bf16 %s, %s, %s, %s" % (v(acc, 16), v(fr(c, j, 1+t), 4), v(fr(c, j, 0), 4), v(acc, 16)))
        return out
    if prio: A("s_setprio %d" % OPT.get("loopprio", 0))
    A("s_barrier")
    stamp(A, 3)
    for r in reads(0): A(r)
    for c in range(NCH):
        A("s_waitcnt lgkmcnt(0)")
        m = mfmas(c)
        rd = reads(c+1) if c+1 < NCH else []
        A(m[0])
        if c+1 < NCH:
            A("s_barrier")
        k = 0
        for mi in range(1, 6):
            for _ in range(4):
                if k < len(rd) and mi <= 4:
                    A(rd[k]); k += 1
            A(m[mi])
    A("s_nop 15")
    stamp(A, 4)
    if prio: A("s_setprio %d" % prio)
    A("""
    s_mov_b32 s28, %s
    s_mov_b32 s29, %s
    s_mov_b32 s30, 1.0
    s_mov_b32 s31, 1.0
    v_mov_b32 v118, %s
    v_mov_b32 v119, %s
    s_lshl_b32 s26, s13, 7
    s_lshl_b32 s27, s12, 5
    s_add_u32 s26, s26, s27
    v_and_b32 v12, 15, v0
    v_add_u32 v12, s26, v12
    s_movk_i32 s27, 3072
    v_mul_lo_u32 v12, v12, s27
    s_mul_i32 s26, s14, 192
    s_add_u32 s26, s26, 0x%x
    v_bfe_u32 v13, v0, 4, 1
    v_lshlrev_b32 v13, 5, v13
    v_lshl_add_u32 v13, v15, 4, v13
    v_add3_u32 v12, v12, v13, s26
    v_add_u32 v13, %d, v12
    """ % (f32(C1), f32(C1), f32(C0), f32(C0), WS_H, 16*3072))
    for t in range(3):
        acc = ACC + 16*t
        gelu_pairs(A, acc, 16, TMP, 28, 118, 30)
        for q in range(8):
            A("v_cvt_pk_bf16_f32 %s, %s, %s" % (v(FR+8*t+q), v(acc+2*q), v(acc+2*q+1)))
        A("s_nop 1")
        for q in range(4):
            A("v_permlane16_swap_b32 %s, %s" % (v(FR+8*t+q), v(FR+8*t+4+q)))
        A("global_store_dwordx4 v12, %s, s[10:11] offset:%d%s" % (v(FR+8*t, 4), 64*t, " sc1" if sc1 else ""))
        A("global_store_dwordx4 v13, %s, s[10:11] offset:%d%s" % (v(FR+8*t+4, 4), 64*t, " sc1" if sc1 else ""))
    A("s_branch %s" % L("mlp1_done"))
    A.label(L("loader"))
    A("""
    s_sub_u32 s12, s12, 4
    s_add_u32 s16, s10, 0x%x
    s_addc_u32 s17, s11, 0
    s_mov_b32 s18, %d
    s_mov_b32 s19, 0x20000
    s_mov_b32 s20, s4
    s_mov_b32 s21, s5
    s_mov_b32 s22, %d
    s_mov_b32 s23, 0x20000
    v_lshrrev_b32 v14, 2, v0
    v_mul_u32_u24 v14, 1280, v14
    v_lshrrev_b32 v15, 4, v0
    v_xor_b32 v15, v15, v0
    v_and_b32 v15, 3, v15
    v_lshl_add_u32 v2, v15, 4, v14
    v_add_u32 v3, %d, v2
    """ % (WS_Y, S_*D_*2, D_*F_*2, 16*1280 - 1024))
    A("s_mov_b32 s27, 43691")
    for jj in range(2):
        A("s_add_u32 s28, s12, %d" % (4*jj))
        A("s_lshl_b32 s28, s28, 6")
        A("v_add_u32 v21, s28, v0")
        A("v_mul_lo_u32 v22, v21, s27")
        A("v_lshrrev_b32 v22, 19, v22")
        A("v_mul_u32_u24 v23, 12, v22")
        A("v_sub_u32 v21, v21, v23")
        A("v_mul_u32_u24 v22, 3072, v22")
        A("v_lshl_add_u32 %s, v21, 4, v22" % v(6+jj))
    A("""
    s_lshl_b32 s30, s13, 7
    s_lshl_b32 s26, s12, 5
    s_add_u32 s30, s30, s26
    s_mul_i32 s30, s30, 1280
    s_mul_i32 s31, s14, 192
    s_lshl_b32 s32, s12, 11
    s_lshl_b32 s33, s12, 10
    """)
    def mk_issue(nw):
        def issue(c):
            slot = c % NSLOT
            A("s_add_u32 m0, s32, %d" % (slot*SLOT))
            A("s_nop 0")
            for j in range(2):
                A("buffer_load_dwordx4 %s, s[16:19], s30 offen offset:%d%s lds" % (v(2+j), 1024*j, SC))
            A("s_add_u32 s30, s30, 64")
            for jj in range(nw):
                A("s_add_u32 m0, s33, %d" % (slot*SLOT + WOFF + 4096*jj))
                A("s_nop 0")
                A("buffer_load_dwordx4 %s, s[20:23], s31 offen lds" % v(6+jj))
            A("s_add_u32 s31, s31, %d" % (32*3072))
        return issue
    if loader_head: loader_head(A)
    if prio: A("s_setprio 0")
    A("s_cmp_lt_u32 s12, 2")
    A("s_cbranch_scc0 %s" % L("loaderB"))
    loader_loop(A, mk_issue(2), NCH, NSLOT, 4)
    A("s_branch %s" % L("loader_end"))
    A.label(L("loaderB"))
    loader_loop(A, mk_issue(1), NCH, NSLOT, 3)
    A.label(L("loader_end"))
    if prio: A("s_setprio %d" % prio)
    if after_loader: after_loader(A)
    A.label(L("mlp1_done"))
```

```python
from common import *
import common
from k1 import TILE, POS, INVPOS, tile_const
SLOT = 16384
WOFF = 8192
NCH = 20
NSLOT = 5
OPT = {}
def qkv_map(A):
    A("""
    s_and_b32 s3, s96, 7
    s_lshr_b32 s15, s96, 3
    s_and_b32 s13, s3, 3
    s_lshl_b32 s13, s13, 2
    s_and_b32 s24, s15, 3
    s_add_u32 s13, s13, s24
    s_lshr_b32 s14, s3, 2
    s_lshl_b32 s14, s14, 3
    s_lshr_b32 s24, s15, 2
    s_add_u32 s14, s14, s24
    """)
def qkv_body(A, L, sc1=True, loader_tail=None, loader_head=None):
    SC = " sc1" if sc1 else ""
    qkv_map(A)
    A("s_cmp_ge_u32 s97, 4")
    A("s_cbranch_scc1 %s" % L("qkv_loader"))
    XA, XB, WA, WB = 2, 4, 6, 8
    FR, ACC = 16, 64
    A("""
    s_and_b32 s24, s97, 1
    s_lshr_b32 s25, s97, 1
    v_and_b32 v14, 31, v0
    v_lshrrev_b32 v15, 5, v0
    v_lshrrev_b32 v16, 2, v14
    v_and_b32 v16, 3, v16
    v_xor_b32 v16, v15, v16
    s_lshl_b32 s26, s24, 12
    v_lshlrev_b32 v17, 6, v14
    v_add_u32 v17, s26, v17
    """)
    for st in range(2):
        A("v_xor_b32 v18, %d, v16" % (2*st))
        A("v_lshl_add_u32 %s, v18, 4, v17" % v(XA+st))
        A("v_add_u32 %s, 0x10000, %s" % (v(XB+st), v(XA+st)))
    A("""
    v_lshrrev_b32 v18, 4, v0
    v_and_b32 v19, 15, v0
    v_and_b32 v20, 1, v18
    v_lshlrev_b32 v20, 2, v20
    v_and_b32 v21, 3, v19
    v_add_u32 v20, v20, v21
    v_lshlrev_b32 v20, 3, v20
    v_lshrrev_b32 v21, 2, v19
    v_lshrrev_b32 v22, 1, v18
    v_lshl_add_u32 v22, v22, 3, v21
    v_lshlrev_b32 v22, 8, v22
    v_add_u32 v22, %d, v22
    v_lshlrev_b32 v21, 3, v21
    """ % WOFF)
    A("s_cmp_eq_u32 s25, 0")
    A("s_cbranch_scc0 %s" % L("qkv_nw1"))
    for nw, tiles in ((0, ('A', 'B')), (1, ('C', 'D'))):
        if nw == 1: A.label(L("qkv_nw1"))
        for ti, T in enumerate(tiles):
            c = tile_const(T)
            A("s_mov_b32 s26, 0x%08x" % (c & 0xffffffff))
            A("s_mov_b32 s27, 0x%08x" % (c >> 32))
            A("v_lshrrev_b64 v[24:25], v20, s[26:27]")
            A("v_and_b32 v24, 0xff, v24")
            A("v_xor_b32 v24, v24, v21")
            A("v_lshl_add_u32 %s, v24, 3, v22" % v(WA+ti))
            A("v_add_u32 %s, 0x10000, %s" % (v(WB+ti), v(WA+ti)))
        def fr(p, which): return FR + (p % 3)*16 + which*4
        def reads(p):
            c, st = p // 2, p % 2
            slot = c % NSLOT
            xa, wa, so = (XA, WA, slot*SLOT) if slot < 4 else (XB, WB, 0)
            rr = []
            for t in range(2):
                rr.append("ds_read_b128 %s, %s offset:%d" % (v(fr(p, t), 4), v(xa+st), so + t*2048))
            for t in range(2):
                for u in range(2):
                    rr.append("ds_read_b64_tr_b16 %s, %s offset:%d" % (v(fr(p, 2+t)+2*u, 2), v(wa+t), so + st*4096 + u*1024))
            return [rr[0], rr[2], rr[3], rr[4], rr[5], rr[1]]
        def mfmas(p):
            out = []
            for tm in range(2):
                for tn in range(2):
                    acc = ACC + 16*(2*tm + tn)
                    xf, wf = fr(p, tm), fr(p, 2+tn)
                    aa, bb = (wf, xf) if nw == 0 else (xf, wf)
                    out.append("v_mfma_f32_32x32x16_bf16 %s, %s, %s, %s" % (v(acc, 16), v(aa, 4), v(bb, 4), "0" if p == 0 else v(acc, 16)))
            return out
        A("s_barrier")
        stamp(A, 1)
        for r in reads(0) + reads(1): A(r)
        NP = 2*NCH
        for p in range(NP):
            m = mfmas(p)
            rd = reads(p+2) if p+2 < NP else []
            if p % 2 == 0:
                A("s_waitcnt lgkmcnt(0)")
            A(m[0])
            if p % 2 == 0 and p+2 < NP:
                A("s_barrier")
            k = 0
            for mi in range(1, 4):
                for _ in range(3):
                    if k < len(rd) and mi <= 2:
                        A(rd[k]); k += 1
                A(m[mi])
        A("s_nop 15")
        stamp(A, 2)
        A("""
        s_lshl_b32 s28, s13, 2
        s_lshl_b32 s29, s24, 1
        s_add_u32 s28, s28, s29
        s_lshl_b32 s30, s14, 1
        """)
        P = 16
        if nw == 0:
            A("v_lshlrev_b32 v2, 4, v0")
            A("s_mov_b32 s36, %s" % f32(QSCALE))
            for tm in range(2):
                A("s_add_u32 s31, s28, %d" % tm)
                A("""
                s_lshr_b32 s32, s31, 3
                s_mul_i32 s32, s32, %d
                s_and_b32 s33, s31, 7
                s_lshl_b32 s33, s33, 10
                s_add_u32 s32, s32, s33
                s_lshl_b32 s34, s31, 10
                """ % CHUNK)
                for hd in range(2):
                    accK = ACC + 16*(2*tm + 0) + 8*hd
                    accQ = ACC + 16*(2*tm + 1) + 8*hd
                    pk, pq = P + 8*hd, P + 8*hd + 4
                    A("s_add_u32 s35, s30, %d" % hd)
                    A("s_mul_i32 s37, s35, %d" % HEADKV)
                    A("s_add_u32 s37, s37, s32")
                    A("v_add_u32 v3, s37, v2")
                    for q in range(4):
                        A("v_cvt_pk_bf16_f32 %s, %s, %s" % (v(pk+q), v(accK+2*q), v(accK+2*q+1)))
                    A("global_store_dwordx4 v3, %s, s[10:11]%s" % (v(pk, 4), SC))
                    A("s_lshl_b32 s37, s35, 16")
                    A("s_add_u32 s37, s37, s34")
                    A("s_add_u32 s37, s37, 0x%x" % WS_QLO)
                    A("v_add_u32 v4, s37, v2")
                    for q in range(8):
                        A("v_mul_f32 %s, s36, %s" % (v(accQ+q), v(accQ+q)))
                    for q in range(4):
                        A("v_cvt_pk_bf16_f32 %s, %s, %s" % (v(pq+q), v(accQ+2*q), v(accQ+2*q+1)))
                    A("global_store_dwordx4 v4, %s, s[10:11]%s" % (v(pq, 4), SC))
        else:
            A("""
            v_cmp_gt_u32 vcc, 20, v14
            v_and_b32 v5, 30, v14
            v_cmp_eq_u32 s[40:41], 28, v5
            s_or_b64 s[42:43], vcc, s[40:41]
            v_subrev_u32 v5, 8, v14
            v_cndmask_b32 v5, v14, v5, s[40:41]
            v_lshlrev_b32 v5, 4, v5
            v_mul_u32_u24 v6, %d, v15
            v_add_u32 v5, v5, v6
            v_subrev_u32 v7, 20, v14
            v_cmp_gt_u32 s[44:45], 8, v7
            v_lshrrev_b32 v8, 2, v7
            v_and_b32 v7, 3, v7
            v_lshlrev_b32 v7, 6, v7
            v_lshl_add_u32 v7, v15, 3, v7
            v_mov_b32 v9, 0x3f803f80
            v_cmp_eq_u32 vcc, 29, v14
            v_mov_b32 v11, 0
            s_nop 0
            v_cndmask_b32 v9, v9, v11, vcc
            v_mov_b32 v10, 1.0
            v_mov_b32 v11, %s
            v_cndmask_b32 v10, v10, v11, s[44:45]
            s_mov_b64 s[46:47], exec
            """ % (VB, f32(QSCALE)))
            for tm in range(2):
                A("s_add_u32 s31, s28, %d" % tm)
                A("""
                s_lshr_b32 s32, s31, 3
                s_mul_i32 s32, s32, %d
                s_and_b32 s33, s31, 7
                s_mul_i32 s34, s33, %d
                s_add_u32 s34, s34, s32
                s_add_u32 s34, s34, %d
                s_lshl_b32 s35, s33, 8
                s_add_u32 s35, s35, s32
                s_add_u32 s35, s35, %d
                s_lshl_b32 s38, s31, 8
                s_add_u32 s38, s38, 0x%x
                """ % (CHUNK, VT, OFF_V, OFF_KHI, WS_QHI))
                for tn in range(2):
                    acc = ACC + 16*(2*tm + tn)
                    P = 16 + 16*tn
                    if tn == 1:
                        for q in range(16):
                            A("v_mul_f32 %s, v10, %s" % (v(acc+q), v(acc+q)))
                    for q in range(8):
                        A("v_cvt_pk_bf16_f32 %s, %s, %s" % (v(P+q), v(acc+2*q), v(acc+2*q+1)))
                    A("v_add_u32 v12, s30, v8")
                    if tn == 0:
                        A("s_mov_b32 s37, %d" % HEADKV)
                        A("v_mul_lo_u32 v12, v12, s37")
                        A("v_add3_u32 v12, v12, s35, v7")
                    else:
                        A("v_lshlrev_b32 v12, 14, v12")
                        A("v_add3_u32 v12, v12, s38, v7")
                    A("s_mov_b64 exec, s[44:45]")
                    for q4 in range(4):
                        A("global_store_dwordx2 v12, %s, s[10:11] offset:%d%s" % (v(P+2*q4, 2), 16*q4, SC))
                    A("s_mov_b64 exec, s[46:47]")
                    A("s_add_u32 s37, s30, %d" % tn)
                    A("s_mul_i32 s37, s37, %d" % HEADKV)
                    A("s_add_u32 s37, s37, s34")
                    A("v_add_u32 v13, s37, v5")
                    for q in range(8):
                        A("v_cndmask_b32 %s, %s, v9, s[40:41]" % (v(P+8+q), v(P+q)))
                    A("s_mov_b64 exec, s[42:43]")
                    A("global_store_dwordx4 v13, %s, s[10:11]%s" % (v(P+8, 4), SC))
                    A("global_store_dwordx4 v13, %s, s[10:11] offset:%d%s" % (v(P+12, 4), 2*VB, SC))
                    A("s_mov_b64 exec, s[46:47]")
                    A("s_nop 1")
        A("s_branch %s" % L("qkv_done"))
    A.label(L("qkv_loader"))
    A("""
    s_sub_u32 s12, s97, 4
    s_mov_b32 s16, s4
    s_mov_b32 s17, s5
    s_mov_b32 s18, %d
    s_mov_b32 s19, 0x20000
    s_mov_b32 s20, s6
    s_mov_b32 s21, s7
    s_mov_b32 s22, %d
    s_mov_b32 s23, 0x20000
    v_lshrrev_b32 v14, 2, v0
    v_mul_u32_u24 v14, 1280, v14
    v_lshrrev_b32 v15, 4, v0
    v_xor_b32 v16, v15, v0
    v_and_b32 v16, 3, v16
    v_lshl_add_u32 v2, v16, 4, v14
    v_add_u32 v3, %d, v2
    """ % (S_*D_*2, D_*3*D_*2, 16*1280 - 1024))
    inv = 0
    for p, g in enumerate(INVPOS): inv |= g << (4*p)
    A("""
    v_and_b32 v21, 15, v0
    v_lshlrev_b32 v22, 2, v15
    v_xor_b32 v21, v21, v22
    v_lshlrev_b32 v21, 2, v21
    s_mov_b32 s26, 0x%08x
    s_mov_b32 s27, 0x%08x
    v_lshrrev_b64 v[22:23], v21, s[26:27]
    v_and_b32 v22, 15, v22
    v_mul_u32_u24 v23, 52, v22
    v_lshrrev_b32 v23, 8, v23
    v_mul_u32_u24 v21, 5, v23
    v_sub_u32 v22, v22, v21
    v_lshlrev_b32 v22, 4, v22
    v_mul_u32_u24 v23, 1280, v23
    v_add_u32 v22, v22, v23
    v_mul_u32_u24 v23, 3840, v15
    v_add_u32 v6, v22, v23
    v_add_u32 v7, %d, v6
    s_lshl_b32 s30, s13, 7
    s_lshl_b32 s26, s12, 5
    s_add_u32 s30, s30, s26
    s_mul_i32 s30, s30, 1280
    s_mul_i32 s31, s12, %d
    s_mul_i32 s26, s14, 80
    s_add_u32 s31, s31, s26
    s_lshl_b32 s32, s12, 11
    """ % (inv & 0xffffffff, inv >> 32, 4*3840 - 1024, 8*3840))
    def issue(c):
        slot = c % NSLOT
        A("s_add_u32 m0, s32, %d" % (slot*SLOT))
        A("s_nop 0")
        for j in range(2):
            A("buffer_load_dwordx4 %s, s[16:19], s30 offen offset:%d lds" % (v(2+j), 1024*j))
        A("s_add_u32 m0, s32, %d" % (slot*SLOT + WOFF))
        A("s_add_u32 s30, s30, 64")
        for j in range(2):
            A("buffer_load_dwordx4 %s, s[20:23], s31 offen offset:%d lds" % (v(6+j), 1024*j))
        A("s_add_u32 s31, s31, %d" % (32*3840))
    if loader_head: loader_head(A)
    loader_loop(A, issue, NCH, NSLOT, 4)
    if loader_tail: loader_tail(A)
    A.label(L("qkv_done"))

def ln_body(A, L, sc1=True):
    SC = " sc1" if sc1 else ""
    A("""
    s_lshl_b32 s24, s96, 3
    s_add_u32 s24, s24, s97
    s_mul_i32 s25, s24, 1280
    v_lshlrev_b32 v10, 4, v0
    v_lshlrev_b32 v11, 2, v0
    v_add_u32 v12, s25, v10
    v_add_u32 v13, s25, v11
    global_load_dwordx4 v[16:19], v12, s[4:5]
    global_load_dword v20, v13, s[4:5] offset:1024
    global_load_dwordx4 v[32:35], v10, s[8:9]
    global_load_dword v36, v11, s[8:9] offset:1024
    """)
    def unpack(dst, src16, src4):
        for q in range(4):
            A("v_lshlrev_b32 %s, 16, %s" % (v(dst+2*q), v(src16+q)))
            A("v_and_b32 %s, 0xffff0000, %s" % (v(dst+2*q+1), v(src16+q)))
        A("v_lshlrev_b32 %s, 16, %s" % (v(dst+8), v(src4)))
        A("v_and_b32 %s, 0xffff0000, %s" % (v(dst+9), v(src4)))
    return unpack

def ln_finish(A, unpack, sc1=True):
    SC = " sc1" if sc1 else ""
    unpack(40, 16, 20); unpack(60, 32, 36)
    A("v_add_f32 v70, v40, v41")
    A("v_mul_f32 v72, v40, v60")
    for q in range(2, 10): A("v_add_f32 v70, v70, %s" % v(40+q))
    for q in range(1, 10): A("v_fmac_f32 v72, %s, %s" % (v(40+q), v(60+q)))
    wave_reduce_add(A, [70, 72], [74, 76])
    A("s_mov_b32 s26, %s" % f32(1.0/640))
    A("v_mul_f32 v70, s26, v70")
    for q in range(10): A("v_sub_f32 %s, %s, v70" % (v(40+q), v(40+q)))
    A("v_mul_f32 v74, v40, v40")
    for q in range(1, 10): A("v_fmac_f32 v74, %s, %s" % (v(40+q), v(40+q)))
    wave_reduce_add(A, [74], [76])
    A("s_mov_b32 s27, %s" % f32(1e-5))
    A("s_mov_b32 s28, %s" % f32(-1.4426950408889634))
    A("v_mov_b32 v78, s27")
    A("v_fmac_f32 v78, s26, v74")
    A("v_rsq_f32 v78, v78")
    A("v_mul_f32 v72, s28, v72")
    A("v_exp_f32 v72, v72")
    for q in range(10): A("v_mul_f32 %s, %s, v78" % (v(40+q), v(40+q)))
    A("v_add_f32 v72, 1.0, v72")
    A("v_rcp_f32 v72, v72")
    for q in range(5): A("v_cvt_pk_bf16_f32 %s, %s, %s" % (v(80+q), v(40+2*q), v(40+2*q+1)))
    A("s_add_u32 s25, s25, 0x%x" % WS_Y)
    A("v_add_u32 v12, s25, v10")
    A("v_add_u32 v13, s25, v11")
    A("global_store_dwordx4 v12, v[80:83], s[10:11]%s" % SC)
    A("global_store_dword v13, v84, s[10:11] offset:1024%s" % SC)
    A("s_lshl_b32 s24, s24, 2")
    A("s_add_u32 s24, s24, 0x%x" % WS_G)
    A("v_mov_b32 v14, s24")
    A("s_mov_b64 exec, 1")
    A("global_store_dword v14, v72, s[10:11]%s" % SC)
    A("s_mov_b64 exec, -1")
```

```python
import common, sys
import build, pers, pattn, pmlp1, pg64, pqkv
def mk(path, gens, stamps=False, opt={}, ao={}):
    common.STAMPS = stamps
    pers.OPT.clear(); pers.OPT.update(opt)
    pattn.OPT.clear(); pattn.OPT.update(ao)
    return build.build(gens, path)
lad = {"ladder":[1,1,1,0,0,0,2,2]}
mk("p2.s", [pers.gen_p1, pers.gen_p2], False, {}, lad)
mk("p2s.s", [pers.gen_p1, pers.gen_p2], True, {}, lad)
mk("p1.s", [pers.gen_p], False, {}, lad)
mk("p1s.s", [pers.gen_p], True, {}, lad)
```

```python
import sys
from common import *
import importlib
NAME = "gated_mix__softmax_full_mha__mixer_channel_mlp__prompt"
def header():
    return open("cdna_kernels/%s.s.ref" % NAME).read().split("; Override launch")[0]
def build(kgens, path, repeat=None):
    A = Asm()
    infos = []
    for g in kgens:
        infos.append(g(A))
    out = header()
    order = repeat if repeat else infos
    if len(order) == 1 and order[0]['name'] == NAME + "_kernel":
        k = order[0]
        out += "; @launch grid=(%d,1,1) block=(%d,1,1) lds=%d\n" % (k['grid'], k['block'], k['lds'])
    else:
        for k in order:
            out += "; @launch kernel=%s grid=(%d,1,1) block=(%d,1,1) lds=%d\n" % (k['name'], k['grid'], k['block'], k['lds'])
    out += '.amdgcn_target "amdgcn-amd-amdhsa--gfx950"\n.text\n'
    out += A.text()
    out += '.section .rodata,"a"\n'
    seen = set()
    for k in infos:
        if k['name'] in seen: continue
        seen.add(k['name'])
        out += ".p2align 6\n" + kernel_desc(k['name'], k['vgpr'], k['sgpr'], k.get('accum'))
    open(path, "w").write(out)
    return infos
if __name__ == "__main__":
    import k1
    build([k1.gen_k1], "t_k1.s")
```

```python
import common, sys
import build, pers, pattn3 as pattn, pmlp1c as pmlp1, pg64, pqkv2 as pqkv
lad = {"ladder":[1,1,1,0,0,0,2,2]}
def mk(path, gens=None, stamps=False, opt={}, ao=lad, q={}, m1={}, g={}):
    common.STAMPS = stamps
    for mod, o in ((pers, opt), (pattn, ao), (pqkv, q), (pmlp1, m1), (pg64, g)):
        mod.OPT.clear(); mod.OPT.update(o)
    return build.build(gens or [pers.gen_p], path)
if __name__ == "__main__":
    mk("p1.s")
    mk("p1s.s", stamps=True)
    mk("p1s_nopfw.s", stamps=True, opt={"pfw":0})
```

```python
from asmlib import *
S_, D_, H_, DH, F_ = 2048, 640, 32, 20, 1536
KA_X, KA_WQKV, KA_WO, KA_BX, KA_W1, KA_B1, KA_W2, KA_B2, KA_GW, KA_OUT, KA_DBG, KA_WS = [8*i for i in range(12)]
CHUNK = 21504
HEADKV = 8*CHUNK
OFF_KHI = 8192
OFF_V = 10240
VT = 1408
VB = 352
WS_KV   = 0
WS_QLO  = 0x600000
WS_QHI  = 0x800000
WS_Y    = 0x900000
WS_G    = 0xC00000
WS_H    = 0xD00000
WS_O    = 0x1400000
WS_BMIX = 0x1800000
WS_END  = 0x1E00000
QSCALE = 1.4426950408889634 / (20 ** 0.5)
import struct
def f32(x):
    return "0x%08x" % struct.unpack("<I", struct.pack("<f", x))[0]

def wave_reduce_add(A, regs, tmps):
    n = len(regs)
    def pad(k):
        need = k - (n - 1)
        if need > 0:
            A("s_nop %d" % (need - 1))
    for sh in (8, 4, 2, 1):
        pad(2)
        for r in regs:
            A("v_add_f32_dpp %s, %s, %s row_ror:%d row_mask:0xf bank_mask:0xf" % (v(r), v(r), v(r), sh))
    for sw in ("v_permlane16_swap_b32", "v_permlane32_swap_b32"):
        for r, t in zip(regs, tmps):
            A("v_mov_b32 %s, %s" % (v(t), v(r)))
        pad(2)
        A("s_nop 0")
        for r, t in zip(regs, tmps):
            A("%s %s, %s" % (sw, v(r), v(t)))
        pad(1)
        A("s_nop 0")
        for r, t in zip(regs, tmps):
            A("v_add_f32 %s, %s, %s" % (v(r), v(r), v(t)))

WS_STAMP = 0x2000000
STAMPS = False
NSTAMP = 16
def stamp(A, idx, wave="s97", who=0):
    if not STAMPS: return
    lab = A.new("st")
    A("s_cmp_lg_u32 %s, %d" % (wave, who))
    A("s_cbranch_scc1 %s" % lab)
    A("s_memrealtime s[58:59]")
    A("s_memtime s[98:99]")
    A("s_waitcnt lgkmcnt(0)")
    A("s_mov_b32 s%d, s58" % (60+2*idx))
    A("s_mov_b32 s%d, s98" % (61+2*idx))
    A.label(lab)
def stamp_init(A):
    if not STAMPS: return
    for i in range(60, 60+2*NSTAMP):
        A("s_mov_b32 s%d, 0" % i)
def stamp_flush(A, kid, wave="s97", who=0, wgreg="s96"):
    if not STAMPS: return
    lab = A.new("stf")
    A("s_waitcnt lgkmcnt(0)")
    A("s_cmp_lg_u32 %s, %d" % (wave, who))
    A("s_cbranch_scc1 %s" % lab)
    A("s_mov_b64 exec, 1")
    A("s_lshl_b32 s58, %s, 8" % wgreg)
    A("s_add_u32 s58, s58, 0x%x" % (WS_STAMP + kid*0x20000))
    A("v_mov_b32 v0, s58")
    for i in range(NSTAMP//2):
        for j in range(4):
            A("v_mov_b32 v%d, s%d" % (2+j, 60+4*i+j))
        A("global_store_dwordx4 v0, v[2:5], s[10:11] offset:%d" % (16*i))
        A("s_nop 1")
    A("s_mov_b64 exec, -1")
    A.label(lab)

WS_FLAG = 0x1F00000
FL_LN, FL_QKV, FL_H, FL_O, FL_NONCE = 0x0, 0x800, 0x1000, 0x1800, 0x2000
def nonce_make(A):
    A("""
    s_load_dwordx2 s[8:9], s[0:1], %d
    s_mov_b64 exec, 1
    v_mov_b32 v2, 0x%x
    global_load_dword v3, v2, s[10:11] sc1
    s_waitcnt vmcnt(0) lgkmcnt(0)
    v_add_u32 v3, 1, v3
    v_max_u32 v3, 1, v3
    global_store_dword v2, v3, s[10:11] sc1
    v_mov_b32 v2, 0
    global_store_dword v2, v3, s[8:9] sc1
    s_mov_b64 exec, -1
    """ % (KA_DBG, WS_FLAG + FL_NONCE))
def nonce_get(A):
    lp, ok = A.new("ng"), A.new("ngok")
    A("""
    s_load_dwordx2 s[8:9], s[0:1], %d
    v_mov_b32 v2, 0
    s_mov_b32 s56, 0
    s_waitcnt lgkmcnt(0)
    """ % KA_DBG)
    A.label(lp)
    A("""
    global_load_dword v3, v2, s[8:9] sc1
    s_add_u32 s56, s56, 1
    s_waitcnt vmcnt(0)
    v_readfirstlane_b32 s100, v3
    s_nop 3
    s_cmp_lg_u32 s100, 0
    s_cbranch_scc1 %s
    s_sleep 4
    s_cmp_lt_u32 s56, 0x8000
    s_cbranch_scc1 %s
    """ % (ok, lp))
    A.label(ok)
def flag_signal(A, off, grp_sreg, member_sreg):
    A("""
    s_lshl_b32 s56, %s, 7
    s_lshl_b32 s57, %s, 2
    s_add_u32 s56, s56, s57
    s_add_u32 s56, s56, 0x%x
    v_mov_b32 v2, s56
    v_mov_b32 v3, s100
    s_mov_b64 exec, 1
    global_store_dword v2, v3, s[10:11] sc1
    s_mov_b64 exec, -1
    """ % (grp_sreg, member_sreg, WS_FLAG + off))
def flag_wait(A, off, grp_sreg, n):
    lp, ok = A.new("fw"), A.new("fwok")
    A("""
    s_lshl_b32 s56, %s, 7
    s_add_u32 s56, s56, 0x%x
    v_mbcnt_lo_u32_b32 v2, -1, 0
    v_mbcnt_hi_u32_b32 v2, -1, v2
    v_min_u32 v2, %d, v2
    v_lshl_add_u32 v2, v2, 2, s56
    s_mov_b32 s57, 0
    """ % (grp_sreg, WS_FLAG + off, n-1))
    A.label(lp)
    A("""
    global_load_dword v3, v2, s[10:11] sc1
    s_add_u32 s57, s57, 1
    s_waitcnt vmcnt(0)
    v_cmp_ne_u32 vcc, s100, v3
    s_cbranch_vccz %s
    s_sleep 2
    s_cmp_lt_u32 s57, 0x8000
    s_cbranch_scc1 %s
    """ % (ok, lp))
    A.label(ok)

def prefetch(A, base, start_sreg, nbytes, wave_sreg, nwaves, vlane, vt, vdst, stride=128, soff=0):
    per_instr = 64*stride
    ninstr = -(-nbytes // per_instr)
    per_wave = -(-ninstr // nwaves)
    A("s_mul_i32 s98, %s, %d" % (wave_sreg, per_wave*per_instr))
    A("s_add_u32 s98, s98, %s" % start_sreg)
    if soff: A("s_add_u32 s98, s98, 0x%x" % soff)
    A("v_mul_u32_u24 %s, %d, %s" % (v(vt), stride, v(vlane)))
    A("v_add_u32 %s, s98, %s" % (v(vt), v(vt)))
    A("s_add_u32 s99, %s, 0x%x" % (start_sreg, soff + nbytes - 4))
    for i in range(per_wave):
        A("v_min_u32 %s, s99, %s" % (v(vt+1), v(vt)))
        A("global_load_dword %s, %s, %s" % (v(vdst), v(vt+1), base))
        if i + 1 < per_wave:
            A("v_add_u32 %s, %d, %s" % (v(vt), per_instr, v(vt)))
    return per_wave

def loader_loop(A, issue, NCH, NSLOT, per):
    first = min(2, NSLOT, NCH)
    issued = 0
    for c in range(first):
        issue(c); issued += 1
    for c in range(NCH):
        A("s_waitcnt vmcnt(%d)" % (per*(issued - c - 1)))
        A("s_barrier")
        while issued < NCH and issued < c + NSLOT:
            issue(issued); issued += 1

KT = 1280
KHS = 64*KT
WS_K = 0x0
WS_VT = 0x300000
VTS = 640*64
VSTR = 4224
VROW = 528
OSTR = 32768 + 128
AOFFV = 3*4096
ASLOT = AOFFV + 22*VROW

OTB = 640*128
```

```python
from common import *
import common
LDS_FLAG = 3*ASLOT
CHUNK = ASLOT
OFF_V = AOFFV
def dsel(n): return n if n <= 20 else 21
def check_conflicts():
    for tile in range(2):
        for m2 in range(2):
            ad = [OFF_V + dsel(l & 31)*VROW + (l >> 5)*16 + (4*tile + 2*m2)*16 for l in range(64)]
            print("attn V", tile, m2, conflicts(ad, 16))

QLO = (8, 16); QHI = (12, 20)
KLO, KHI, VF0, VF1, PP = 24, 28, 32, 36, 40
OO = (48, 64)
S0, S1 = 80, 96
T0 = 112
AKLO, AKHI, AV0, AV1 = 2, 3, 4, 5
OPT = {}

def mf(d, a_, b_, c):
    return "v_mfma_f32_32x32x16_bf16 %s, %s, %s, %s" % (v(d, 16), v(a_, 4), v(b_, 4), c if isinstance(c, str) else v(c, 16))

def attn_body(A, L, sc1=True, wait_kv=None):
    SC = " sc1" if sc1 else ""
    A("""
    s_mov_b32 s12, s97
    s_and_b32 s13, s96, 7
    s_lshr_b32 s14, s96, 3
    s_and_b32 s14, s14, 3
    s_lshl_b32 s14, s14, 3
    s_add_u32 s13, s13, s14
    s_lshr_b32 s14, s96, 5
    v_lshlrev_b32 v1, 4, v0
    """)
    A("""
    s_and_b32 s20, s12, 3
    s_lshr_b32 s21, s12, 2
    s_lshl_b32 s15, s14, 3
    s_lshl_b32 s22, s20, 1
    s_add_u32 s15, s15, s22
    """)
    A("""
    s_mov_b32 s16, s10
    s_mov_b32 s17, s11
    s_mov_b32 s18, 0x%x
    s_mov_b32 s19, 0x20000
    s_mul_i32 s42, s13, 5
    s_and_b32 s43, s42, 1
    s_lshr_b32 s42, s42, 1
    s_mul_i32 s27, s42, %d
    s_add_u32 s27, s27, 0x%x
    s_mul_i32 s28, s13, %d
    s_add_u32 s28, s28, 0x%x
    """ % (WS_QLO, OSTR, WS_K, 20*64, WS_VT))
    for t in range(3):
        sid, sl, sst, vo = 44+t, 47+t, 50+t, 124+t
        if t < 2:
            A("s_add_u32 s%d, s12, %d" % (sid, 8*t))
        else:
            A("s_add_u32 s%d, s12, 16" % sid)
            A("s_cmp_lt_u32 s12, 7")
            A("s_cselect_b32 s%d, s%d, s%d" % (sid, sid, sid-1))
        lv, le = A.new("dv"), A.new("de")
        A("s_lshl_b32 s%d, s%d, 10" % (sl, sid))
        A("s_cmp_ge_u32 s%d, 12" % sid)
        A("s_cbranch_scc1 %s" % lv)
        A("s_mov_b32 s%d, 4096" % sst)
        A("s_lshr_b32 s29, s%d, 2" % sid)
        A("s_mul_i32 s29, s29, %d" % OSTR)
        A("s_add_u32 s29, s29, s27")
        A("s_and_b32 s40, s%d, 3" % sid)
        A("s_lshl_b32 s40, s40, 10")
        A("s_add_u32 s29, s29, s40")
        A("v_add_u32 %s, s29, v1" % v(vo))
        A("s_branch %s" % le)
        A.label(lv)
        A("""
        s_mov_b32 s%d, VSTEP
        s_sub_u32 s29, s%d, 12
        s_lshl_b32 s29, s29, 6
        v_add_u32 v6, s29, v0
        v_mul_u32_u24 v7, 1986, v6
        v_lshrrev_b32 v7, 16, v7
        v_mul_u32_u24 v2, 33, v7
        v_sub_u32 v6, v6, v2
        v_min_u32 v6, 31, v6
        v_min_u32 v7, 19, v7
        v_lshlrev_b32 v7, 6, v7
        v_lshrrev_b32 v2, 2, v6
        v_mul_u32_u24 v2, %d, v2
        v_and_b32 v6, 3, v6
        v_lshl_add_u32 v7, v6, 4, v7
        v_add3_u32 %s, s28, v7, v2
        """.replace("VSTEP", str(8*VTS)) % (sst, sid, VTS, v(vo)))
        A.label(le)
    A("""
    s_cmp_eq_u32 s12, 6
    s_cselect_b32 s54, 0x000fffff, -1
    s_cselect_b32 s55, 0, -1
    """)
    def dma(chunk_sreg, loff):
        for t in range(3):
            A("s_add_u32 m0, s%d, %s" % (47+t, loff))
            A("s_mul_i32 s28, s%d, %s" % (50+t, chunk_sreg))
            if t == 2: A("s_mov_b64 exec, s[54:55]")
            A("buffer_load_dwordx4 %s, s[16:19], s28 offen%s lds" % (v(124+t), SC))
            if t == 2: A("s_mov_b64 exec, -1")
    if wait_kv: wait_kv(A)
    A("""
    s_mul_i32 s27, s42, %d
    s_lshl_b32 s28, s15, 9
    s_add_u32 s27, s27, s28
    s_add_u32 s27, s27, 0x%x
    v_and_b32 v7, 31, v0
    v_lshrrev_b32 v6, 5, v0
    v_add_u32 v6, s43, v6
    v_lshrrev_b32 v2, 1, v6
    v_mul_u32_u24 v2, %d, v2
    v_and_b32 v6, 1, v6
    v_lshl_add_u32 v6, v6, 3, v2
    v_lshl_add_u32 v6, v7, 4, v6
    v_add_u32 v6, s27, v6
    v_add_u32 v2, %d, v6
    s_lshl_b32 s28, s43, 3
    s_add_u32 s27, s27, s28
    s_add_u32 s27, s27, %d
    v_lshl_add_u32 v7, v7, 4, s27
    """ % (OSTR, WS_QLO, OSTR, OSTR, 2*OSTR))
    for b in range(2):
        A("global_load_dwordx2 %s, v6, s[10:11] offset:%d%s" % (v(QLO[b], 2), 512*b, SC))
        A("global_load_dwordx2 %s, v2, s[10:11] offset:%d%s" % (v(QLO[b]+2, 2), 512*b, SC))
        A("global_load_dwordx2 %s, v7, s[10:11] offset:%d%s" % (v(QHI[b], 2), 512*b, SC))
    A("s_mov_b32 s35, 0")
    A("v_mov_b32 v7, 0")
    A("v_mov_b32 v6, %d" % LDS_FLAG)
    A("ds_write_b32 v6, v7")
    A.label(L("restart"))
    dma("0", "0")
    dma("1", "%d" % CHUNK)
    lab = A.new("crow")
    A("s_cmp_ge_u32 s12, 3")
    A("s_cbranch_scc1 %s" % lab)
    A("""
    s_mul_i32 s29, s12, %d
    s_add_u32 s29, s29, %d
    v_add_u32 v6, s29, v1
    v_mov_b32 v112, 0x3f803f80
    v_mov_b32 v113, 0x3f803f80
    v_mov_b32 v114, 0x3f803f80
    v_mov_b32 v115, 0x3f803f80
    v_mov_b32 v116, 0
    v_mov_b32 v117, 0
    v_mov_b32 v118, 0
    v_mov_b32 v119, 0
    v_cmp_gt_u32 vcc, 33, v0
    s_and_saveexec_b64 s[40:41], vcc
    ds_write_b128 v6, v[112:115]
    ds_write_b128 v6, v[116:119] offset:%d
    s_mov_b64 exec, s[40:41]
    """ % (CHUNK, OFF_V + 20*VROW, VROW))
    A.label(lab)
    def addrs(kh_reg):
        A("""
        s_lshl_b32 s29, %s, 11
        v_and_b32 v7, 31, v0
        v_lshrrev_b32 v5, 5, v0
        v_add_u32 v2, s43, v5
        v_and_b32 v3, 1, v2
        v_lshrrev_b32 v2, 1, v2
        v_lshlrev_b32 v2, 12, v2
        v_lshl_add_u32 v2, v3, 3, v2
        v_lshl_add_u32 v3, v7, 4, s29
        v_add_u32 v2, v2, v3
        s_lshl_b32 s29, s43, 3
        s_add_u32 s29, s29, 8192
        v_add_u32 v3, s29, v3
        s_lshl_b32 s29, %s, 8
        s_add_u32 s29, s29, %d
        v_min_u32 v4, 21, v7
        v_mul_u32_u24 v4, %d, v4
        v_lshlrev_b32 v5, 4, v5
        v_add3_u32 v4, v4, v5, s29
        v_mov_b32 v5, v4
        """ % (kh_reg, kh_reg, OFF_V, VROW))
    A("s_mov_b32 s36, 0")
    addrs("s36")
    A("v_mov_b32 %s, 0x3f803f80" % v(KHI+2))
    A("v_mov_b32 %s, 0x00003f80" % v(KHI+3))
    for b in range(2):
        for r in range(16):
            A("v_mov_b32 %s, 0" % v(OO[b]+r))
    for r in range(4, 8):
        A("v_mov_b32 %s, 0" % v(PP+r))
    A("""
    s_mov_b32 s30, 0
    s_mov_b32 s31, %d
    s_mov_b32 s32, %d
    s_mov_b32 s33, 0
    s_mov_b32 s38, 0x%x
    s_mov_b32 s39, %d
    """ % (2, 2*CHUNK, (-2*CHUNK) & 0xffffffff, CHUNK))
    A("s_cmp_lg_u32 s35, 0")
    A("s_cbranch_scc1 %s" % L("second"))
    A("s_waitcnt vmcnt(6)")
    A("v_cmp_gt_u32 vcc, 32, v0")
    A("s_nop 1")
    for b in range(2):
        A("v_cndmask_b32 %s, 0, %s, vcc" % (v(QHI[b]), v(QHI[b])))
        A("v_cndmask_b32 %s, 0, %s, vcc" % (v(QHI[b]+1), v(QHI[b]+1)))
        A("v_mov_b32 %s, 0" % v(QHI[b]+2))
        A("v_mov_b32 %s, 0" % v(QHI[b]+3))
    A.label(L("second"))
    A("s_waitcnt vmcnt(3) lgkmcnt(0)")
    A("s_barrier")
    def rowmax(dst, src):
        A("v_max3_f32 %s, %s, %s, %s" % (v(dst), v(src), v(src+1), v(src+2)))
        for q in range(3, 15, 2):
            A("v_max3_f32 %s, %s, %s, %s" % (v(dst), v(dst), v(src+q), v(src+q+1)))
        A("v_max_f32 %s, %s, %s" % (v(dst), v(dst), v(src+15)))
    def set_c(m, b):
        q2, q3 = QHI[b]+2, QHI[b]+3
        t1, t2, t3, t4 = T0+8, T0+9, T0+10, T0+11
        A("""
        v_mov_b32 v{t1}, v{m}
        s_nop 1
        v_permlane32_swap_b32 v{m}, v{t1}
        s_nop 0
        v_max_f32 v{m}, v{m}, v{t1}
        v_sub_f32 v{m}, 0, v{m}
        v_cvt_pk_bf16_f32 v{t1}, v{m}, v{m}
        v_lshlrev_b32 v{t1}, 16, v{t1}
        v_sub_f32 v{t2}, v{m}, v{t1}
        v_cvt_pk_bf16_f32 v{t3}, v{t2}, v{t2}
        v_lshlrev_b32 v{t3}, 16, v{t3}
        v_sub_f32 v{t2}, v{t2}, v{t3}
        v_cmp_gt_u32 vcc, 32, v0
        v_cvt_pk_bf16_f32 v{q2}, v{t1}, v{t3}
        v_mov_b32 v{t4}, 0
        v_cvt_pk_bf16_f32 v{q3}, v{t2}, v{t4}
        v_cndmask_b32 v{q2}, 0, v{q2}, vcc
        v_cndmask_b32 v{q3}, 0, v{q3}, vcc
        """.format(m=m, t1=t1, t2=t2, t3=t3, t4=t4, q2=q2, q3=q3))
    A("s_cmp_lg_u32 s35, 0")
    A("s_cbranch_scc1 %s" % L("havec"))
    A("ds_read_b64 %s, v2" % v(KLO, 2))
    A("ds_read_b64 %s, v2 offset:4096" % v(KLO+2, 2))
    A("ds_read_b64 %s, v3" % v(KHI, 2))
    A("s_waitcnt lgkmcnt(0)")
    A(mf(S0, KLO, QLO[0], "0")); A(mf(S1, KLO, QLO[1], "0"))
    A(mf(S0, KHI, QHI[0], S0)); A(mf(S1, KHI, QHI[1], S1))
    A("s_nop 15")
    rowmax(T0, S0); rowmax(T0+1, S1)
    set_c(T0, 0); set_c(T0+1, 1)
    A.label(L("havec"))
    addrs("s21")
    A("ds_read_b64 %s, v2" % v(KLO, 2))
    A("ds_read_b64 %s, v2 offset:4096" % v(KLO+2, 2))
    A("ds_read_b64 %s, v3" % v(KHI, 2))
    A("ds_read_b128 %s, v5 offset:32" % v(VF1, 4))
    A("ds_read_b128 %s, v4" % v(VF0, 4))
    A("s_waitcnt lgkmcnt(0)")
    A(mf(S0, KLO, QLO[0], "0"))
    A(mf(S0, KHI, QHI[0], S0))
    A("s_nop 7")
    A("s_nop 3")
    if OPT.get("prio"):
        lab = A.new("pr")
        A("s_cmp_ge_u32 s12, 4")
        A("s_cbranch_scc0 %s" % lab)
        A("s_setprio 1")
        A.label(lab)
    stamp(A, 3)
    A(".p2align 6")
    A.label(L("loop"))
    def E(S, q):
        for r in range(4):
            if OPT.get("movexp"):
                A("v_and_b32 %s, 0x3fffffff, %s" % (v(S+4*q+r), v(S+4*q+r)))
                A("s_nop 0") if OPT["movexp"] == 2 else A("v_and_b32 %s, 0x3fffffff, %s" % (v(S+4*q+r), v(S+4*q+r)))
            else:
                A("v_exp_f32 %s, %s" % (v(S+4*q+r), v(S+4*q+r)))
        if OPT.get("perm"):
            A("v_perm_b32 %s, %s, %s, s60" % (v(PP+2*q), v(S+4*q+1), v(S+4*q)))
            A("v_perm_b32 %s, %s, %s, s60" % (v(PP+2*q+1), v(S+4*q+3), v(S+4*q+2)))
        else:
            A("v_cvt_pk_bf16_f32 %s, %s, %s" % (v(PP+2*q), v(S+4*q), v(S+4*q+1)))
            A("v_cvt_pk_bf16_f32 %s, %s, %s" % (v(PP+2*q+1), v(S+4*q+2), v(S+4*q+3)))
    def RD(x):
        if not OPT.get("nolds"): A(x)
    def WT(x):
        if not (OPT.get("nolds") or OPT.get("nowait")): A(x)
    for t in range(4):
        if t == 3:
            if not OPT.get("nobar"):
                A("s_waitcnt vmcnt(0)")
                A("s_barrier")
            lab = A.new("nodma")
            A("s_cmp_ge_u32 s31, 8")
            A("s_cbranch_scc1 %s" % lab)
            dma("s31", "s32")
            A.label(lab)
            A("s_add_u32 s31, s31, 1")
            A("s_add_u32 s32, s32, %d" % CHUNK)
            A("s_cmp_eq_u32 s32, %d" % (3*CHUNK))
            A("s_cselect_b32 s32, 0, s32")
            A("s_add_u32 s33, s33, 1")
            A("s_cmp_eq_u32 s33, 3")
            A("s_cselect_b32 s33, 0, s33")
            A("s_cselect_b32 s34, s38, s39")
            A("v_add_u32 v2, s34, v2")
            A("v_add_u32 v3, s34, v3")
        kt = (t + 1) % 4
        lad = OPT.get("ladder")
        if lad and (t == 0 or lad[2*t] != lad[2*t-1] ): A("s_setprio %d" % lad[2*t])
        A(mf(S1, KLO, QLO[1], "0"))
        RD("ds_read_b64 %s, v2 offset:%d" % (v(KLO, 2), kt*512))
        RD("ds_read_b64 %s, v2 offset:%d" % (v(KLO+2, 2), kt*512 + 4096))
        E(S0, 0)
        if not OPT.get("noqk2"): A(mf(S1, KHI, QHI[1], S1))
        RD("ds_read_b64 %s, v3 offset:%d" % (v(KHI, 2), kt*512))
        E(S0, 1)
        A(mf(OO[1], VF1, PP+4, OO[1]))
        RD("ds_read_b128 %s, v5 offset:%d" % (v(VF1, 4), t*64 + 32))
        if t == 3:
            A("v_add_u32 v5, s34, v5")
        E(S0, 2)
        WT("s_waitcnt lgkmcnt(4)")
        A(mf(OO[0], VF0, PP, OO[0]))
        E(S0, 3)
        WT("s_waitcnt lgkmcnt(0)")
        if lad and lad[2*t+1] != lad[2*t]: A("s_setprio %d" % lad[2*t+1])
        A(mf(S0, KLO, QLO[0], "0"))
        E(S1, 0)
        if not OPT.get("noqk2"): A(mf(S0, KHI, QHI[0], S0))
        E(S1, 1)
        A(mf(OO[0], VF1, PP+4, OO[0]))
        E(S1, 2)
        A(mf(OO[1], VF0, PP, OO[1]))
        if t == 3:
            A("v_add_u32 v4, s34, v4")
        RD("ds_read_b128 %s, v4 offset:%d" % (v(VF0, 4), kt*64))
        E(S1, 3)
    A("s_add_u32 s30, s30, 1")
    A("s_cmp_lt_u32 s30, 8")
    A("s_cbranch_scc1 %s" % L("loop"))
    A(mf(OO[1], VF1, PP+4, OO[1]))
    stamp(A, 4)
    XB0, XB1, STG = 0, 2*CHUNK, 2*CHUNK + 12288
    A("""
    s_mul_i32 s27, s20, 3072
    s_mul_i32 s28, s21, %d
    s_add_u32 s28, s28, s27
    v_add_u32 v6, s28, v1
    s_xor_b32 s28, s21, 1
    s_mul_i32 s28, s28, %d
    s_add_u32 s28, s28, s27
    v_add_u32 v7, s28, v1
    s_cmp_eq_u32 s21, 0
    s_nop 7
    s_cbranch_scc1 %s
    """ % (XB1, XB1, L("give1")))
    for give, keep, lab in ((0, 1, None), (1, 0, "give1")):
        if lab: A.label(L(lab))
        for q in range(3):
            A("ds_write_b128 v6, %s offset:%d" % (v(OO[give]+4*q, 4), 1024*q))
        A("s_waitcnt lgkmcnt(0)")
        A("s_barrier")
        for q in range(3):
            A("ds_read_b128 %s, v7 offset:%d" % (v(S0+4*q, 4), 1024*q))
        A("s_waitcnt lgkmcnt(0)")
        for r in range(12):
            A("v_add_f32 %s, %s, %s" % (v(S0+r), v(S0+r), v(OO[keep]+r)))
        if lab is None:
            A("s_branch %s" % L("fin"))
    A.label(L("fin"))
    OF = S0
    A("""
    s_mul_i32 s27, s20, 2560
    s_lshl_b32 s28, s21, 6
    s_add_u32 s27, s27, s28
    s_add_u32 s27, s27, %d
    v_and_b32 v7, 31, v0
    v_lshrrev_b32 v6, 5, v0
    v_lshlrev_b32 v6, 9, v6
    v_lshl_add_u32 v6, v7, 1, v6
    v_add_u32 v6, s27, v6
    v_mov_b32 v%d, %s
    v_mov_b32 v%d, %s
    s_nop 1
    v_permlane32_swap_b32 v%d, v%d
    s_nop 0
    v_rcp_f32 v%d, v%d
    """ % (STG, T0, v(OF+8), T0+1, v(OF+8), T0, T0+1, T0+2, T0+1))
    A("v_add_f32 %s, abs(%s), abs(%s)" % (v(T0+3), v(OF), v(OF+1)))
    for r in range(2, 12):
        A("v_add_f32 %s, %s, abs(%s)" % (v(T0+3), v(T0+3), v(OF+r)))
    for r in range(12):
        A("v_mul_f32 %s, %s, %s" % (v(OF+r), v(T0+2), v(OF+r)))
    for q in range(6):
        A("v_cvt_pk_bf16_f32 %s, %s, %s" % (v(PP+q), v(OF+2*q), v(OF+2*q+1)))
    for q in range(4):
        d0 = 8*(q >> 1) + 2*(q & 1)
        A("ds_write_b16 v6, %s offset:%d" % (v(PP+q), d0*128))
        A("ds_write_b16_d16_hi v6, %s offset:%d" % (v(PP+q), (d0+1)*128))
    A("v_cmp_gt_u32 vcc, 32, v0")
    A("s_and_saveexec_b64 s[40:41], vcc")
    for q in range(4, 6):
        d0 = 16 + 2*(q & 1)
        A("ds_write_b16 v6, %s offset:%d" % (v(PP+q), d0*128))
        A("ds_write_b16_d16_hi v6, %s offset:%d" % (v(PP+q), (d0+1)*128))
    A("s_mov_b64 exec, s[40:41]")
    A("s_waitcnt lgkmcnt(0)")
    A("s_barrier")
    def ocopy(jreg, R):
        A("""
        s_lshl_b32 s27, %s, 6
        v_add_u32 v6, s27, v0
        v_lshlrev_b32 v7, 4, v6
        v_add_u32 v7, %d, v7
        ds_read_b128 v[%d:%d], v7
        v_mul_u32_u24 v7, 52429, v6
        v_lshrrev_b32 v7, 23, v7
        v_mul_u32_u24 v2, 160, v7
        v_sub_u32 v6, v6, v2
        s_lshl_b32 s27, s14, 2
        v_add_u32 v7, s27, v7
        v_mul_u32_u24 v7, %d, v7
        s_mul_i32 s27, s13, 2560
        s_add_u32 s27, s27, 0x%x
        v_lshl_add_u32 v6, v6, 4, v7
        v_add_u32 v6, s27, v6
        s_waitcnt lgkmcnt(0)
        global_store_dwordx4 v6, v[%d:%d], s[10:11]%s
        """ % (jreg, STG, R, R+3, OTB, WS_O, R, R+3, SC))
    ocopy("s12", S1)
    lab = A.new("oc2")
    A("s_cmp_ge_u32 s12, 2")
    A("s_cbranch_scc1 %s" % lab)
    A("s_add_u32 s28, s12, 8")
    A("s_nop 1")
    ocopy("s28", S1+4)
    A.label(lab)
    A("s_cmp_lg_u32 s35, 0")
    A("s_cbranch_scc1 %s" % L("done"))
    A("""
    v_mov_b32 v7, 0x7f800000
    v_cmp_nlt_f32 vcc, %s, v7
    v_mov_b32 v6, %d
    v_mov_b32 v7, 1
    s_and_saveexec_b64 s[40:41], vcc
    s_cbranch_execz %s
    ds_write_b32 v6, v7
    """ % (v(T0+3), LDS_FLAG, L("noflag")))
    A.label(L("noflag"))
    A("""
    s_mov_b64 exec, s[40:41]
    s_waitcnt lgkmcnt(0)
    s_barrier
    ds_read_b32 v7, v6
    s_waitcnt lgkmcnt(0)
    v_readfirstlane_b32 s36, v7
    s_nop 3
    s_cmp_eq_u32 s36, 0
    s_cbranch_scc1 %s
    """ % L("done"))
    A("s_mov_b32 s35, 1")
    for b in range(2):
        A("v_mov_b32 %s, 0" % v(QHI[b]+2))
        A("v_mov_b32 %s, 0" % v(QHI[b]+3))
        A("v_mov_b32 %s, 0xff800000" % v(T0+b))
    A("s_mov_b32 s30, 0")
    A("s_mov_b32 s31, 0")
    A("s_waitcnt vmcnt(0)")
    A.label(L("fb_chunk"))
    A("s_barrier")
    dma("s31", "0")
    A("s_waitcnt vmcnt(0)")
    A("s_barrier")
    A("s_mov_b32 s36, 0")
    addrs("s36")
    A("s_mov_b32 s37, 0")
    A.label(L("fb_tile"))
    A("ds_read_b64 %s, v2" % v(KLO, 2))
    A("ds_read_b64 %s, v2 offset:4096" % v(KLO+2, 2))
    A("ds_read_b64 %s, v3" % v(KHI, 2))
    A("v_add_u32 v2, 512, v2")
    A("v_add_u32 v3, 512, v3")
    A("s_waitcnt lgkmcnt(0)")
    A(mf(S0, KLO, QLO[0], "0")); A(mf(S1, KLO, QLO[1], "0"))
    A(mf(S0, KHI, QHI[0], S0)); A(mf(S1, KHI, QHI[1], S1))
    A("s_nop 15")
    rowmax(T0+2, S0); rowmax(T0+3, S1)
    A("v_max_f32 %s, %s, %s" % (v(T0), v(T0), v(T0+2)))
    A("v_max_f32 %s, %s, %s" % (v(T0+1), v(T0+1), v(T0+3)))
    A("s_add_u32 s37, s37, 1")
    A("s_cmp_lt_u32 s37, 8")
    A("s_cbranch_scc1 %s" % L("fb_tile"))
    A("s_add_u32 s31, s31, 1")
    A("s_add_u32 s30, s30, 1")
    A("s_cmp_lt_u32 s30, 8")
    A("s_cbranch_scc1 %s" % L("fb_chunk"))
    set_c(T0, 0); set_c(T0+1, 1)
    A("s_barrier")
    A("s_branch %s" % L("restart"))
    A.label(L("done"))
```

```python
from common import *
import common, pqkv, pqkv2, pattn3 as pattn, pmlp1c as pmlp1, pg64
OPT = {}
def entry(A, L, name):
    A.l.append(kernel_header(name))
    A("s_cmp_ge_u32 s2, 512")
    A("s_cbranch_scc1 %s" % L("exit"))
    A("""
    s_load_dwordx2 s[10:11], s[0:1], %d
    s_load_dwordx4 s[4:7], s[0:1], 0
    v_lshrrev_b32 v1, 6, v0
    v_and_b32 v0, 63, v0
    s_and_b32 s96, s2, 255
    v_readfirstlane_b32 s97, v1
    s_nop 3
    """ % KA_WS)
    stamp_init(A)
    stamp(A, 0)

def pf_qkv(A):
    lx, ld = A.new("pfx"), A.new("pfd")
    A("""
    s_and_b32 s40, s96, 7
    s_lshr_b32 s41, s96, 3
    s_lshl_b32 s42, s97, 6
    v_add_u32 v2, s42, v0
    s_cmp_ge_u32 s97, 3
    s_cbranch_scc1 %s
    s_and_b32 s42, s40, 3
    s_lshl_b32 s42, s42, 9
    s_lshl_b32 s43, s41, 4
    s_add_u32 s42, s42, s43
    s_mul_i32 s42, s42, 1280
    v_min_u32 v2, 159, v2
    v_lshl_add_u32 v2, v2, 7, s42
    global_load_dword v127, v2, s[4:5]
    s_branch %s
    """ % (lx, ld))
    A.label(lx)
    A("""
    v_subrev_u32 v2, 192, v2
    v_lshrrev_b32 v3, 4, v2
    v_and_b32 v2, 15, v2
    s_lshr_b32 s42, s40, 2
    s_lshl_b32 s43, s42, 1
    s_sub_u32 s43, 15, s43
    v_min_u32 v2, s43, v2
    s_mul_i32 s43, s41, 20
    v_add_u32 v3, s43, v3
    v_mul_u32_u24 v3, 3840, v3
    v_lshl_add_u32 v2, v2, 7, v3
    s_lshl_b32 s42, s42, 11
    v_add_u32 v2, s42, v2
    global_load_dword v127, v2, s[6:7]
    """)
    A.label(ld)

def pf_qkv_staged(A, first=2):
    ld = A.new("pfs")
    A("s_cmp_lg_u32 s97, 3")
    A("s_cbranch_scc1 %s" % ld)
    A("""
    s_and_b32 s40, s96, 7
    s_lshr_b32 s41, s96, 3
    s_and_b32 s42, s40, 3
    s_lshl_b32 s42, s42, 9
    s_lshl_b32 s43, s41, 4
    s_add_u32 s42, s42, s43
    v_and_b32 v2, 15, v0
    v_add_u32 v2, s42, v2
    v_mul_u32_u24 v2, 1280, v2
    v_add_u32 v2, %d, v2
    s_lshr_b32 s42, s40, 2
    s_lshl_b32 s43, s42, 1
    s_sub_u32 s43, 15, s43
    v_and_b32 v3, 15, v0
    v_min_u32 v3, s43, v3
    v_bfe_u32 v4, v0, 4, 1
    s_lshl_b32 s43, s41, 1
    s_add_u32 s43, s43, %d
    v_add_u32 v4, s43, v4
    v_mul_u32_u24 v4, 3840, v4
    v_lshl_add_u32 v3, v3, 7, v4
    s_lshl_b32 s42, s42, 11
    v_add_u32 v3, s42, v3
    """ % (128*first, 64*first))
    for st in range(first, 10):
        A("s_mov_b32 exec_lo, 0xffff")
        A("s_mov_b32 exec_hi, 0")
        A("global_load_dword v127, v2, s[4:5]")
        A("s_mov_b32 exec_lo, -1")
        A("global_load_dword v127, v3, s[6:7]")
        if st < 9:
            A("s_mov_b64 exec, -1")
            A("v_add_u32 v2, 128, v2")
            A("v_add_u32 v3, %d, v3" % (64*3840))
    A("s_mov_b64 exec, -1")
    A.label(ld)

def pf_w1_paced(A):
    ld = A.new("pw1")
    A("s_cmp_lg_u32 s97, 1")
    A("s_cbranch_scc1 %s" % ld)
    A("""
    s_load_dwordx2 s[40:41], s[0:1], %d
    s_and_b32 s42, s96, 7
    s_lshr_b32 s43, s96, 3
    s_lshr_b32 s42, s42, 2
    s_mul_i32 s42, s42, 1536
    s_mul_i32 s43, s43, 20
    s_waitcnt lgkmcnt(0)
    """ % KA_W1)
    for i in range(4):
        A("""
        v_add_u32 v2, %d, v0
        v_min_u32 v2, 239, v2
        v_mul_u32_u24 v3, 5462, v2
        v_lshrrev_b32 v3, 16, v3
        v_mul_u32_u24 v5, 12, v3
        v_sub_u32 v2, v2, v5
        v_add_u32 v3, s43, v3
        v_mul_u32_u24 v3, 3072, v3
        v_lshl_add_u32 v2, v2, 7, v3
        v_add_u32 v2, s42, v2
        global_load_dword v127, v2, s[40:41]
        s_waitcnt vmcnt(0)
        """ % (64*i))
    A.label(ld)

TLB_LINES = [0x8000, 0x20A000, 0x590000, 0x608000, 0x890000, 0xB90000, 0xC10000, 0x1310000, 0x1690000, 0x1F10000]
def pf_tlb(A, wave=2):
    ld = A.new("ptl")
    A("s_cmp_lg_u32 s97, %d" % wave)
    A("s_cbranch_scc1 %s" % ld)
    A("v_mov_b32 v2, 0x%x" % TLB_LINES[0])
    for i, a in enumerate(TLB_LINES[1:], 1):
        A("v_cmp_eq_u32 vcc, %d, v0" % i)
        A("v_mov_b32 v3, 0x%x" % a)
        A("s_nop 0")
        A("v_cndmask_b32 v2, v2, v3, vcc")
    A("global_load_dword v127, v2, s[10:11]")
    A.label(ld)

def pf_code(A, name, nbytes_label):
    lab, here = A.new("pc"), A.new("pch")
    A("s_cmp_lg_u32 s97, 7")
    A("s_cbranch_scc1 %s" % lab)
    A("s_getpc_b64 s[40:41]")
    A.label(here)
    A("s_sub_u32 s40, s40, %s-%s" % (here, name))
    A("s_subb_u32 s41, s41, 0")
    A("s_lshr_b32 s42, s96, 3")
    A("v_lshlrev_b32 v2, 5, v0")
    A("v_add_u32 v2, s42, v2")
    A("v_lshlrev_b32 v2, 7, v2")
    A("v_min_u32 v2, %s-%s-4, v2" % (nbytes_label, name))
    A("global_load_dword v127, v2, s[40:41]")
    A.label(lab)

def pf_w2(A):
    ld = A.new("pwd")
    A("s_cmp_lg_u32 s97, 5")
    A("s_cbranch_scc1 %s" % ld)
    A("s_load_dwordx2 s[40:41], s[0:1], %d" % KA_W2)
    A("s_mul_i32 s42, s96, 7680")
    A("v_min_u32 v2, 59, v0")
    A("v_lshl_add_u32 v2, v2, 7, s42")
    A("s_waitcnt lgkmcnt(0)")
    A("global_load_dword v127, v2, s[40:41]")
    A.label(ld)

def pf_w1m(A):
    ld = A.new("pwm")
    A("s_cmp_lg_u32 s97, 6")
    A("s_cbranch_scc1 %s" % ld)
    A("s_load_dwordx2 s[40:41], s[0:1], %d" % KA_W1)
    A("s_mul_i32 s42, s96, 7680")
    A("v_min_u32 v2, 59, v0")
    A("v_lshl_add_u32 v2, v2, 7, s42")
    A("s_waitcnt lgkmcnt(0)")
    A("global_load_dword v127, v2, s[40:41]")
    A.label(ld)

def pf_wo(A):
    A("""
    s_lshr_b32 s40, s96, 3
    s_mul_i32 s40, s40, 25600
    s_lshl_b32 s41, s12, 6
    v_add_u32 v16, s41, v0
    v_min_u32 v16, 199, v16
    v_lshl_add_u32 v16, v16, 7, s40
    global_load_dword v17, v16, s[8:9]
    """)

def pf_weights(A):
    l1, l2, ld = A.new("pw1"), A.new("pw2"), A.new("pwd")
    A("""
    s_load_dwordx2 s[4:5], s[0:1], %d
    s_load_dwordx2 s[6:7], s[0:1], %d
    s_load_dwordx2 s[8:9], s[0:1], %d
    s_and_b32 s24, s96, 7
    s_lshr_b32 s25, s96, 3
    s_waitcnt lgkmcnt(0)
    s_cmp_ge_u32 s97, 4
    s_cbranch_scc1 %s
    """ % (KA_W1, KA_W2, KA_WO, l1))
    A("""
    s_lshl_b32 s26, s97, 6
    v_add_u32 v2, s26, v0
    v_min_u32 v2, 239, v2
    v_mul_u32_u24 v3, 5462, v2
    v_lshrrev_b32 v3, 16, v3
    v_mul_u32_u24 v5, 12, v3
    v_sub_u32 v2, v2, v5
    s_mul_i32 s26, s25, 20
    v_add_u32 v3, s26, v3
    v_mul_u32_u24 v3, 3072, v3
    v_lshl_add_u32 v2, v2, 7, v3
    s_lshr_b32 s26, s24, 2
    s_mul_i32 s26, s26, 1536
    v_add_u32 v2, s26, v2
    global_load_dword v127, v2, s[4:5]
    s_branch %s
    """ % ld)
    A.label(l1)
    A("s_cmp_eq_u32 s97, 4")
    A("s_cbranch_scc0 %s" % l2)
    A("""
    s_mul_i32 s26, s96, 7680
    v_min_u32 v2, 59, v0
    v_lshl_add_u32 v2, v2, 7, s26
    global_load_dword v127, v2, s[6:7]
    s_branch %s
    """ % ld)
    A.label(l2)
    A("s_cmp_eq_u32 s97, 5")
    A("s_cbranch_scc0 %s" % ld)
    A("""
    s_mul_i32 s26, s96, 3200
    v_min_u32 v2, 24, v0
    v_lshl_add_u32 v2, v2, 7, s26
    global_load_dword v127, v2, s[8:9]
    """)
    A.label(ld)

def ln_part(A, L, signal):
    A("s_load_dwordx4 s[4:7], s[0:1], %d" % KA_X)
    A("s_load_dwordx2 s[8:9], s[0:1], %d" % KA_GW)
    A("s_waitcnt lgkmcnt(0)")
    if OPT.get("pf", 0) == 3: pf_qkv_staged(A, OPT.get("pffirst", 0))
    unpack = pqkv.ln_body(A, L)
    if OPT.get("pf", 0) == 1:
        pf_qkv(A)
        A("s_waitcnt vmcnt(1)")
    else:
        A("s_waitcnt vmcnt(0)")
        if OPT.get("pf", 0) == 2: pf_qkv_staged(A, OPT.get("pffirst", 2))
    pqkv.ln_finish(A, unpack)
    if signal:
        nonce_fetch(A, 0)
        A("s_waitcnt vmcnt(0)")
        A("s_barrier")
        lab = A.new("lnsig")
        A("s_cmp_lg_u32 s97, 0")
        A("s_cbranch_scc1 %s" % lab)
        A("s_lshr_b32 s24, s96, 4")
        A("s_and_b32 s25, s96, 15")
        flag_signal(A, FL_LN, "s24", "s25")
        A.label(lab)
    if OPT.get("pfw", 0): pf_weights(A)
    if OPT.get("pfw1", 0): pf_w1_paced(A)
    if OPT.get("pfw1m", 1): pf_w1m(A)
    if OPT.get("pfw2", 1) == 1:
        pf_w2(A)

def qkv_part(A, L, signal):
    A("s_load_dwordx4 s[4:7], s[0:1], %d" % KA_X)
    pqkv2.qkv_map(A)
    A("s_waitcnt lgkmcnt(0)")
    idle, end = A.new("qidle"), A.new("qend")
    A("s_cmp_ge_u32 s14, 15")
    A("s_cbranch_scc1 %s" % idle)
    pqkv2.qkv_body(A, L, loader_tail=(lambda A: nonce_fetch(A, 4)) if signal else None)
    if signal:
        stamp(A, 3)
        A("s_waitcnt vmcnt(0)")
        stamp(A, 4)
        A("s_barrier")
        stamp(A, 5)
        lab = A.new("qsig")
        A("s_cmp_lg_u32 s97, 4")
        A("s_cbranch_scc1 %s" % lab)
        flag_signal(A, FL_QKV, "s14", "s13")
        A.label(lab)
    A("s_branch %s" % end)
    A.label(idle)
    if signal: nonce_fetch(A, 4)
    A.label(end)

def wait_qkv(A, head="s13"):
    lp, ok = A.new("qw"), A.new("qwok")
    A("s_mul_i32 s27, %s, 20" % head)
    A("""
    s_lshr_b32 s28, s27, 7
    s_add_u32 s27, s27, 19
    s_lshr_b32 s27, s27, 7
    v_mbcnt_lo_u32_b32 v2, -1, 0
    v_mbcnt_hi_u32_b32 v2, -1, v2
    v_and_b32 v3, 15, v2
    v_bfe_u32 v4, v2, 4, 1
    v_lshrrev_b32 v5, 5, v2
    v_mov_b32 v6, s28
    v_mov_b32 v7, s27
    v_cmp_eq_u32 vcc, 0, v4
    v_mul_u32_u24 v5, 5, v5
    s_nop 0
    v_cndmask_b32 v6, v7, v6, vcc
    v_add_u32 v5, v5, v6
    v_lshlrev_b32 v5, 7, v5
    v_lshl_add_u32 v5, v3, 2, v5
    v_add_u32 v5, 0x%x, v5
    v_add_u32 v6, 10, v6
    v_lshlrev_b32 v6, 7, v6
    v_lshl_add_u32 v6, v3, 2, v6
    v_add_u32 v6, 0x%x, v6
    s_mov_b32 s57, 0
    """ % (WS_FLAG + FL_QKV, WS_FLAG + FL_QKV))
    A.label(lp)
    A("""
    global_load_dword v3, v5, s[10:11] sc1
    global_load_dword v4, v6, s[10:11] sc1
    s_add_u32 s57, s57, 1
    s_waitcnt vmcnt(0)
    v_cmp_ne_u32 vcc, s100, v3
    v_cmp_ne_u32 s[40:41], s100, v4
    s_or_b64 vcc, vcc, s[40:41]
    s_cbranch_vccz %s
    s_sleep %d
    s_cmp_lt_u32 s57, 0x8000
    s_cbranch_scc1 %s
    """ % (ok, OPT.get("qsleep", 2), lp))
    A.label(ok)

def attn_part(A, L, wait):
    def wait_kv(A):
        lab = A.new("kvw")
        A("s_cmp_lg_u32 s97, 0")
        A("s_cbranch_scc1 %s" % lab)
        wait_qkv(A)
        A.label(lab)
        A("s_barrier")
        stamp(A, 2)
        if OPT.get("pfw2", 1) == 2: pf_w2(A)
    pattn.attn_body(A, L, wait_kv=wait_kv if wait else None)
    stamp(A, 5)
    A("s_waitcnt vmcnt(0)")
    A("s_barrier")
    lab = A.new("osig")
    A("s_cmp_lg_u32 s97, 0")
    A("s_cbranch_scc1 %s" % lab)
    flag_signal(A, FL_O, "s14", "s13")
    A.label(lab)
    stamp(A, 6)

def mlp_part(A, L, wait_ln):
    P = OPT.get("gprio", 3)
    A("s_load_dwordx4 s[4:7], s[0:1], %d" % KA_W1)
    A("s_setprio %d" % P)
    def head(A):
        if wait_ln:
            lab = A.new("lnw")
            A("s_cmp_lg_u32 s97, 4")
            A("s_cbranch_scc1 %s" % lab)
            flag_wait(A, FL_LN, "s13", 16)
            if OPT.get("gwait", 1):
                A("""
                s_and_b32 s42, s96, 7
                s_lshr_b32 s43, s96, 3
                s_and_b32 s43, s43, 3
                s_lshl_b32 s43, s43, 3
                s_add_u32 s42, s42, s43
                """)
                wait_qkv(A, "s42")
            A.label(lab)
    if wait_ln:
        pmlp1.mlp1_map(A)
        head(A)
        A("s_barrier")
        stamp(A, 6)
    A("s_waitcnt lgkmcnt(0)")
    LG = lambda x: L("m1_" + x)
    pmlp1.mlp1_body(A, LG, prio=P)
    stamp(A, 9)
    A("s_waitcnt vmcnt(0)")
    A("s_barrier")
    stamp(A, 10)
    lab = A.new("hsig")
    A("s_cmp_lg_u32 s97, 4")
    A("s_cbranch_scc1 %s" % lab)
    flag_signal(A, FL_H, "s13", "s14")
    pg64.g64_map(A)
    A("s_lshr_b32 s27, s13, 1")
    flag_wait(A, FL_H, "s27", 16)
    A.label(lab)
    A("s_barrier")
    def wait_o(A):
        A("s_lshr_b32 s27, s13, 2")
        flag_wait(A, FL_O, "s27", 32)
    LG2 = lambda x: L("g2_" + x)
    pg64.g64_body(A, LG2, prio=P, wait_o=wait_o, loader_mid=(pf_wo if OPT.get("pfwo", 1) else None), loader_midB=(pf_wo if OPT.get("pfwo", 1) else None))

def nonce_part(A, L, sync_wave):
    lab = A.new("nomake")
    A("s_waitcnt lgkmcnt(0)")
    A("s_cmp_lg_u32 s2, 0")
    A("s_cbranch_scc1 %s" % lab)
    A("s_cmp_lg_u32 s97, 0")
    A("s_cbranch_scc1 %s" % lab)
    nonce_make(A)
    A.label(lab)
def nonce_fetch(A, who):
    lab = A.new("nofetch")
    A("s_cmp_lg_u32 s97, %d" % who)
    A("s_cbranch_scc1 %s" % lab)
    nonce_get(A)
    A.label(lab)

def gen_p1(A, name="p1_kernel"):
    L = lambda x: "%s_%s" % (name, x)
    entry(A, L, name)
    A("s_waitcnt lgkmcnt(0)")
    A("s_cmp_ge_u32 s2, 256")
    A("s_cbranch_scc1 %s" % L("grole"))
    ln_part(A, L, False)
    stamp(A, 1)
    stamp_flush(A, 0)
    A("s_endpgm")
    A.label(L("grole"))
    qkv_part(A, L, False)
    if common.STAMPS: A("s_waitcnt vmcnt(0)")
    stamp(A, 3)
    stamp_flush(A, 1)
    A.label(L("exit"))
    A("s_endpgm")
    return dict(name=name, vgpr=128, sgpr=102, grid=512, block=512, lds=81920)

def gen_p2(A, name="p2_kernel"):
    L = lambda x: "%s_%s" % (name, x)
    entry(A, L, name)
    nonce_part(A, L, 0)
    A("s_cmp_ge_u32 s2, 256")
    A("s_cbranch_scc1 %s" % L("grole"))
    nonce_fetch(A, 0)
    attn_part(A, L, False)
    stamp_flush(A, 2)
    A("s_endpgm")
    A.label(L("grole"))
    nonce_fetch(A, 4)
    mlp_part(A, L, False)
    stamp_flush(A, 3)
    A.label(L("exit"))
    A("s_endpgm")
    return dict(name=name, vgpr=128, sgpr=102, grid=512, block=512, lds=81920)

def gen_p(A, name="gated_mix__softmax_full_mha__mixer_channel_mlp__prompt_kernel"):
    L = lambda x: "pk_%s" % x
    entry(A, L, name)
    nonce_part(A, L, 0)
    A("s_cmp_ge_u32 s2, 256")
    A("s_cbranch_scc1 %s" % L("grole"))
    if OPT.get("pfcode", 1): pf_code(A, name, L("exit"))
    if OPT.get("pftlb", 0): pf_tlb(A)
    ln_part(A, L, True)
    stamp(A, 1)
    attn_part(A, L, True)
    stamp_flush(A, 2)
    A("s_endpgm")
    A.label(L("grole"))
    qkv_part(A, L, True)
    mlp_part(A, L, True)
    stamp_flush(A, 3)
    A.label(L("exit"))
    A("s_endpgm")
    return dict(name=name, vgpr=128, sgpr=102, grid=512, block=512, lds=81920)
```

```python
from common import *
import common
SLOT = 18432
WOFF = 8192
NSLOT = 4
OPT = {}
def g64_map(A):
    A("""
    s_and_b32 s3, s96, 7
    s_lshr_b32 s15, s96, 3
    s_lshl_b32 s13, s3, 2
    s_and_b32 s24, s15, 3
    s_add_u32 s13, s13, s24
    s_lshr_b32 s14, s15, 2
    """)
def g64_body(A, L, sc1=True, prio=0, wait_o=None, loader_mid=None, loader_midB=None):
    SC = " sc1" if sc1 else ""
    A("""
    s_load_dwordx4 s[4:7], s[0:1], %d
    s_load_dwordx2 s[8:9], s[0:1], %d
    s_load_dwordx2 s[38:39], s[0:1], %d
    s_mov_b32 s12, s97
    """ % (KA_W2, KA_WO, KA_OUT))
    g64_map(A)
    if prio: A("s_setprio %d" % prio)
    A("s_cmp_ge_u32 s12, 4")
    A("s_cbranch_scc1 %s" % L("g_loader"))
    NB = (NSLOT + 2)//3
    XA = 2; WA = XA + 2*NB
    ACC1, ACC2, FR = 32, 52, 72
    A("""
    v_and_b32 v14, 15, v0
    v_lshrrev_b32 v15, 4, v0
    v_lshrrev_b32 v16, 1, v14
    v_xor_b32 v16, v15, v16
    s_lshl_b32 s26, s12, 11
    v_lshlrev_b32 v17, 7, v14
    v_add_u32 v17, s26, v17
    """)
    for st in range(2):
        A("v_xor_b32 v18, %d, v16" % (4*st))
        A("v_lshl_add_u32 %s, v18, 4, v17" % v(XA+st))
        for b in range(1, NB):
            A("v_add_u32 %s, %d, %s" % (v(XA+2*b+st), 3*SLOT*b, v(XA+st)))
    A("""
    v_lshrrev_b32 v18, 1, v15
    v_lshlrev_b32 v18, 4, v18
    v_and_b32 v19, 1, v15
    v_lshl_add_u32 v18, v19, 2, v18
    v_lshrrev_b32 v19, 2, v14
    v_add_u32 v18, v18, v19
    v_mul_u32_u24 v18, 160, v18
    v_and_b32 v19, 3, v14
    v_lshl_add_u32 v18, v19, 3, v18
    v_add_u32 %s, %d, v18
    """ % (v(WA), WOFF))
    for b in range(1, NB):
        A("v_add_u32 %s, %d, %s" % (v(WA+b), 3*SLOT*b, v(WA)))
    A("""
    s_lshl_b32 s26, s13, 6
    s_lshl_b32 s27, s12, 4
    s_add_u32 s26, s26, s27
    v_add_u32 v20, s26, v14
    s_mul_i32 s27, s14, 80
    v_lshl_add_u32 v21, v15, 2, s27
    v_lshlrev_b32 v22, 2, v20
    v_add_u32 v22, 0x%x, v22
    v_lshlrev_b32 v24, 1, v21
    s_waitcnt lgkmcnt(0)
    global_load_dword v23, v22, s[10:11]%s
    """ % (WS_G, SC))
    for t in range(5):
        A("global_load_dwordx2 %s, v24, s[6:7] offset:%d" % (v(FR+2*t, 2), 32*t))
    A("s_waitcnt vmcnt(0)")
    for t in range(5):
        for q in range(2):
            A("v_lshlrev_b32 %s, 16, %s" % (v(ACC1+4*t+2*q), v(FR+2*t+q)))
            A("v_and_b32 %s, 0xffff0000, %s" % (v(ACC1+4*t+2*q+1), v(FR+2*t+q)))
    XT = 8
    A("""
    v_lshrrev_b32 v18, 2, v14
    v_lshl_add_u32 v18, v15, 3, v18
    v_and_b32 v19, 2, v18
    v_lshrrev_b32 v25, 1, v18
    v_and_b32 v25, 4, v25
    v_or_b32 v19, v19, v25
    v_bfe_u32 v25, v14, 1, 1
    s_lshl_b32 s26, s12, 1
    v_add_u32 v25, s26, v25
    v_xor_b32 v19, v19, v25
    v_lshlrev_b32 v18, 7, v18
    v_lshl_add_u32 v18, v19, 4, v18
    v_and_b32 v19, 1, v14
    v_lshl_add_u32 %s, v19, 3, v18
    """ % v(XT))
    for b in range(1, NB):
        A("v_add_u32 %s, %d, %s" % (v(XT+b), 3*SLOT*b, v(XT)))
    def fr(p, which): return FR + (p % 2)*24 + which*4
    def gemm(NCH, ACC, zero_init, st0, trA=False):
        def reads(p):
            out = []
            c = p // 2; j = p % 2
            slot = c % NSLOT; b = slot // 3; so = (slot % 3)*SLOT
            if trA:
                for u in range(2):
                    out.append("ds_read_b64_tr_b16 %s, %s offset:%d" % (v(fr(p, 0)+2*u, 2), v(XT+b), so + (32*j + 4*u)*128))
            else:
                out.append("ds_read_b128 %s, %s offset:%d" % (v(fr(p, 0), 4), v(XA+2*b+j), so))
            for t in range(5):
                for u in range(2):
                    out.append("ds_read_b64_tr_b16 %s, %s offset:%d" % (v(fr(p, 1+t)+2*u, 2), v(WA+b), so + (32*j + 8*u)*160 + t*32))
            return out
        def mfmas(p):
            return ["v_mfma_f32_16x16x32_bf16 %s, %s, %s, %s" % (v(ACC+4*t, 4), v(fr(p, 1+t), 4), v(fr(p, 0), 4), "0" if (zero_init and p == 0) else v(ACC+4*t, 4)) for t in range(5)]
        if prio: A("s_setprio %d" % OPT.get("loopprio", 0))
        A("s_barrier")
        stamp(A, st0)
        for r in reads(0): A(r)
        NP = 2*NCH
        for p in range(NP):
            A("s_waitcnt lgkmcnt(0)")
            if p % 2 == 1 and p+1 < NP:
                A("s_barrier")
            m = mfmas(p)
            rd = reads(p+1) if p+1 < NP else []
            k = 0
            for mi in range(5):
                A(m[mi])
                for _ in range(3):
                    if k < len(rd):
                        A(rd[k]); k += 1
    gemm(24, ACC1, False, 11)
    stamp(A, 12)
    A("s_barrier")
    stamp(A, 13)
    gemm(10, ACC2, True, 14, trA=True)
    A("s_nop 7")
    if prio: A("s_setprio %d" % prio)
    stamp(A, 15)
    A("v_sub_f32 v22, 1.0, v23")
    A("v_mul_u32_u24 v24, 1280, v20")
    A("v_lshl_add_u32 v24, v21, 1, v24")
    for t in range(5):
        for r in range(4):
            A("v_mul_f32 %s, v22, %s" % (v(ACC1+4*t+r), v(ACC1+4*t+r)))
            A("v_fmac_f32 %s, v23, %s" % (v(ACC1+4*t+r), v(ACC2+4*t+r)))
        A("v_cvt_pk_bf16_f32 %s, %s, %s" % (v(FR+2*t), v(ACC1+4*t), v(ACC1+4*t+1)))
        A("v_cvt_pk_bf16_f32 %s, %s, %s" % (v(FR+2*t+1), v(ACC1+4*t+2), v(ACC1+4*t+3)))
        A("global_store_dwordx2 v24, %s, s[38:39] offset:%d" % (v(FR+2*t, 2), 32*t))
    A("s_branch %s" % L("g_done"))
    A.label(L("g_loader"))
    A("s_sub_u32 s12, s12, 4")
    A("s_waitcnt lgkmcnt(0)")
    A("""
    v_lshrrev_b32 v15, 4, v0
    v_and_b32 v21, 7, v0
    v_lshrrev_b32 v14, 3, v0
    """)
    for j in range(2):
        A("v_add_u32 v22, %d, v15" % (4*j))
        A("v_and_b32 v22, 7, v22")
        A("v_xor_b32 v22, v21, v22")
        A("v_lshlrev_b32 %s, 4, v22" % v(10+j))
    A("s_mov_b32 s27, 52429")
    for jj in range(3):
        A("s_add_u32 s28, s12, %d" % (4*jj))
        A("s_lshl_b32 s28, s28, 6")
        A("v_add_u32 v21, s28, v0")
        A("v_mul_lo_u32 v22, v21, s27")
        A("v_lshrrev_b32 v22, 19, v22")
        A("v_mul_u32_u24 v23, 10, v22")
        A("v_sub_u32 v21, v21, v23")
        A("v_and_b32 v23, 0x33, v22")
        A("v_and_b32 v24, 4, v22")
        A("v_lshl_or_b32 v23, v24, 1, v23")
        A("v_and_b32 v24, 8, v22")
        A("v_lshrrev_b32 v24, 1, v24")
        A("v_or_b32 v23, v23, v24")
        A("v_mul_u32_u24 v23, 1280, v23")
        A("v_lshl_add_u32 %s, v21, 4, v23" % v(6+jj))
    A("s_lshl_b32 s32, s12, 11")
    A("s_lshl_b32 s33, s12, 10")
    def setup(astride, aoff, asize, wreg, wsize):
        A("""
        s_add_u32 s16, s10, 0x%x
        s_addc_u32 s17, s11, 0
        s_mov_b32 s18, %d
        s_mov_b32 s19, 0x20000
        s_mov_b32 s20, s%d
        s_mov_b32 s21, s%d
        s_mov_b32 s22, %d
        s_mov_b32 s23, 0x20000
        s_movk_i32 s26, %d
        v_mul_lo_u32 v12, v14, s26
        v_add_u32 v2, v12, v10
        v_add_u32 v3, v12, v11
        v_add_u32 v3, %d, v3
        s_lshl_b32 s30, s13, 6
        s_lshl_b32 s26, s12, 4
        s_add_u32 s30, s30, s26
        s_mul_i32 s30, s30, %d
        s_mul_i32 s31, s14, 160
        """ % (aoff, asize, wreg, wreg+1, wsize, astride, 8*astride - 1024, astride))
    def setup_o():
        A("""
        s_add_u32 s16, s10, 0x%x
        s_addc_u32 s17, s11, 0
        s_mov_b32 s18, %d
        s_mov_b32 s19, 0x20000
        s_mov_b32 s20, s8
        s_mov_b32 s21, s9
        s_mov_b32 s22, %d
        s_mov_b32 s23, 0x20000
        v_lshrrev_b32 v12, 3, v0
        v_and_b32 v13, 2, v12
        v_and_b32 v21, 7, v0
        v_xor_b32 v13, v13, v21
        v_lshlrev_b32 v12, 7, v12
        v_lshl_add_u32 v2, v13, 4, v12
        v_xor_b32 v13, 4, v13
        v_lshl_add_u32 v3, v13, 4, v12
        s_mul_i32 s30, s13, %d
        s_lshl_b32 s26, s12, 11
        s_add_u32 s30, s30, s26
        s_mul_i32 s31, s14, 160
        """ % (WS_O, 32*OTB, D_*D_*2, OTB))
    def mk_issue(nw, astep=128):
        def issue(c):
            slot = c % NSLOT
            A("s_add_u32 m0, s32, %d" % (slot*SLOT))
            A("s_nop 0")
            for j in range(2):
                A("buffer_load_dwordx4 %s, s[16:19], s30 offen offset:%d%s lds" % (v(2+j), 1024*j, SC))
            A("s_add_u32 s30, s30, %d" % astep)
            for jj in range(nw):
                A("s_add_u32 m0, s33, %d" % (slot*SLOT + WOFF + 4096*jj))
                A("s_nop 0")
                A("buffer_load_dwordx4 %s, s[20:23], s31 offen lds" % v(6+jj))
            A("s_add_u32 s31, s31, %d" % (64*1280))
        return issue
    for var, nw, per in (("A", 3, 5), ("B", 2, 4)):
        if var == "A":
            A("s_cmp_lt_u32 s12, 2")
            A("s_cbranch_scc0 %s" % L("g_loaderB"))
        else:
            A.label(L("g_loaderB"))
        setup(3072, WS_H, S_*F_*2, 4, F_*D_*2)
        if prio: A("s_setprio 0")
        loader_loop(A, mk_issue(nw), 24, NSLOT, per)
        if prio: A("s_setprio %d" % prio)
        if var == "A":
            if loader_mid: loader_mid(A)
            lab = A.new("nosync")
            A("s_cmp_lg_u32 s12, 0")
            A("s_cbranch_scc1 %s" % lab)
            if wait_o: wait_o(A)
            A.label(lab)
        elif loader_midB:
            loader_midB(A)
        A("s_barrier")
        setup_o()
        if prio: A("s_setprio 0")
        loader_loop(A, mk_issue(nw, 8192), 10, NSLOT, per)
        if var == "A":
            A("s_branch %s" % L("g_done"))
    A.label(L("g_done"))
```

```python
from common import *
import common
from kmlp1 import gelu_pairs, C0, C1, CMAP
XSLOT, NX = 16384, 3
WBASE, WSLOT, NW = 49152, 6144, 4
NCH = 20
OPT = {}
def mlp1_map(A):
    A("""
    s_and_b32 s3, s96, 7
    s_lshr_b32 s15, s96, 3
    s_and_b32 s13, s3, 3
    s_lshl_b32 s13, s13, 2
    s_and_b32 s24, s15, 3
    s_add_u32 s13, s13, s24
    s_lshr_b32 s14, s3, 2
    s_lshl_b32 s14, s14, 3
    s_lshr_b32 s24, s15, 2
    s_add_u32 s14, s14, s24
    """)
def mlp1_body(A, L, sc1=True, prio=0):
    SC = " sc1" if sc1 else ""
    A("s_mov_b32 s12, s97")
    mlp1_map(A)
    if prio: A("s_setprio %d" % prio)
    A("s_cmp_ge_u32 s12, 4")
    A("s_cbranch_scc1 %s" % L("loader"))
    XA, WA = 2, 6
    ACC, FR, TMP = 16, 64, 120
    A("""
    v_and_b32 v14, 31, v0
    v_lshrrev_b32 v15, 5, v0
    v_lshrrev_b32 v16, 1, v14
    v_and_b32 v16, 7, v16
    v_xor_b32 v16, v15, v16
    s_lshl_b32 s26, s12, 12
    v_lshlrev_b32 v17, 7, v14
    v_add_u32 v17, s26, v17
    """)
    for st in range(4):
        A("v_xor_b32 v18, %d, v16" % (2*st))
        A("v_lshl_add_u32 %s, v18, 4, v17" % v(XA+st))
    cm = 0
    for cg, x in enumerate(CMAP): cm |= x << (4*cg)
    A("""
    v_lshrrev_b32 v18, 4, v0
    v_and_b32 v19, 15, v0
    v_and_b32 v20, 1, v18
    v_lshlrev_b32 v20, 2, v20
    v_and_b32 v21, 3, v19
    v_add_u32 v20, v20, v21
    v_lshlrev_b32 v20, 2, v20
    s_mov_b32 s26, 0x%08x
    v_lshrrev_b32 v20, v20, s26
    v_and_b32 v20, 7, v20
    v_lshrrev_b32 v21, 2, v19
    v_lshrrev_b32 v22, 1, v18
    v_lshl_add_u32 v22, v22, 3, v21
    v_mul_u32_u24 v22, 192, v22
    v_lshl_add_u32 v22, v20, 3, v22
    v_add_u32 %s, %d, v22
    s_mul_i32 s26, s14, 192
    v_lshlrev_b32 v12, 4, v15
    v_add_u32 v12, s26, v12
    """ % (cm, v(WA), WBASE))
    for t in range(3):
        A("global_load_dwordx4 %s, v12, s[6:7] offset:%d" % (v(FR+8*t, 4), 64*t))
        A("global_load_dwordx4 %s, v12, s[6:7] offset:%d" % (v(FR+8*t+4, 4), 64*t + 32))
    A("s_waitcnt vmcnt(0)")
    for t in range(3):
        for q in range(8):
            A("v_lshlrev_b32 %s, 16, %s" % (v(ACC+16*t+2*q), v(FR+8*t+q)))
            A("v_and_b32 %s, 0xffff0000, %s" % (v(ACC+16*t+2*q+1), v(FR+8*t+q)))
    def fr(p, j, which): return FR + (p % 2)*32 + j*16 + which*4
    def reads(c):
        out = []
        xs = (c // 2) % NX; ws = c % NW
        for st in range(2):
            out.append("ds_read_b128 %s, %s offset:%d" % (v(fr(c, st, 0), 4), v(XA + 2*(c % 2) + st), xs*XSLOT))
            for t in range(3):
                for u in range(2):
                    out.append("ds_read_b64_tr_b16 %s, %s offset:%d" % (v(fr(c, st, 1+t)+2*u, 2), v(WA), ws*WSLOT + (16*st + 4*u)*192 + t*64))
        return out
    def mfmas(c):
        return ["v_mfma_f32_32x32x16_bf16 %s, %s, %s, %s" % (v(ACC+16*t, 16), v(fr(c, j, 1+t), 4), v(fr(c, j, 0), 4), v(ACC+16*t, 16)) for j in range(2) for t in range(3)]
    if prio: A("s_setprio %d" % OPT.get("loopprio", 0))
    A("s_barrier")
    stamp(A, 7)
    for r in reads(0): A(r)
    for c in range(NCH):
        A("s_waitcnt lgkmcnt(0)")
        m = mfmas(c)
        rd = reads(c+1) if c+1 < NCH else []
        A(m[0])
        if c+1 < NCH:
            A("s_barrier")
        k = 0
        for mi in range(1, 6):
            for _ in range(4):
                if k < len(rd) and mi <= 4:
                    A(rd[k]); k += 1
            A(m[mi])
    A("s_nop 15")
    stamp(A, 8)
    if prio: A("s_setprio %d" % prio)
    A("""
    s_mov_b32 s28, %s
    s_mov_b32 s29, %s
    s_mov_b32 s30, 1.0
    s_mov_b32 s31, 1.0
    v_mov_b32 v118, %s
    v_mov_b32 v119, %s
    s_lshl_b32 s26, s13, 7
    s_lshl_b32 s27, s12, 5
    s_add_u32 s26, s26, s27
    v_and_b32 v12, 15, v0
    v_add_u32 v12, s26, v12
    s_movk_i32 s27, 3072
    v_mul_lo_u32 v12, v12, s27
    s_mul_i32 s26, s14, 192
    s_add_u32 s26, s26, 0x%x
    v_bfe_u32 v13, v0, 4, 1
    v_lshlrev_b32 v13, 5, v13
    v_lshl_add_u32 v13, v15, 4, v13
    v_add3_u32 v12, v12, v13, s26
    v_add_u32 v13, %d, v12
    """ % (f32(C1), f32(C1), f32(C0), f32(C0), WS_H, 16*3072))
    for t in range(3):
        acc = ACC + 16*t
        gelu_pairs(A, acc, 16, TMP, 28, 118, 30)
        for q in range(8):
            A("v_cvt_pk_bf16_f32 %s, %s, %s" % (v(FR+8*t+q), v(acc+2*q), v(acc+2*q+1)))
        A("s_nop 1")
        for q in range(4):
            A("v_permlane16_swap_b32 %s, %s" % (v(FR+8*t+q), v(FR+8*t+4+q)))
        A("global_store_dwordx4 v12, %s, s[10:11] offset:%d%s" % (v(FR+8*t, 4), 64*t, SC))
        A("global_store_dwordx4 v13, %s, s[10:11] offset:%d%s" % (v(FR+8*t+4, 4), 64*t, SC))
    A("s_branch %s" % L("mlp1_done"))
    A.label(L("loader"))
    A("""
    s_sub_u32 s12, s12, 4
    s_add_u32 s16, s10, 0x%x
    s_addc_u32 s17, s11, 0
    s_mov_b32 s18, %d
    s_mov_b32 s19, 0x20000
    s_mov_b32 s20, s4
    s_mov_b32 s21, s5
    s_mov_b32 s22, %d
    s_mov_b32 s23, 0x20000
    v_lshrrev_b32 v14, 3, v0
    v_mul_u32_u24 v14, 1280, v14
    v_lshrrev_b32 v15, 4, v0
    v_and_b32 v21, 7, v0
    """ % (WS_Y, S_*D_*2, D_*F_*2))
    for j in range(4):
        A("v_add_u32 v22, %d, v15" % (4*j))
        A("v_and_b32 v22, 7, v22")
        A("v_xor_b32 v22, v21, v22")
        A("v_lshl_add_u32 %s, v22, 4, v14" % v(2+j))
        if j: A("v_add_u32 %s, %d, %s" % (v(2+j), j*(10240-1024), v(2+j)))
    A("s_mov_b32 s27, 43691")
    for jj in range(2):
        A("s_add_u32 s28, s12, %d" % (4*jj))
        A("s_lshl_b32 s28, s28, 6")
        A("v_add_u32 v21, s28, v0")
        A("v_mul_lo_u32 v22, v21, s27")
        A("v_lshrrev_b32 v22, 19, v22")
        A("v_mul_u32_u24 v23, 12, v22")
        A("v_sub_u32 v21, v21, v23")
        A("v_mul_u32_u24 v22, 3072, v22")
        A("v_lshl_add_u32 %s, v21, 4, v22" % v(6+jj))
    A("""
    s_lshl_b32 s30, s13, 7
    s_lshl_b32 s26, s12, 5
    s_add_u32 s30, s30, s26
    s_mul_i32 s30, s30, 1280
    s_mul_i32 s31, s14, 192
    s_lshl_b32 s32, s12, 12
    s_lshl_b32 s33, s12, 10
    s_lshr_b32 s34, s96, 3
    s_and_b32 s35, s34, 3
    s_lshr_b32 s34, s34, 2
    s_mul_i32 s35, s35, 3
    s_add_u32 s34, s34, s35
    s_cmp_ge_u32 s34, 10
    s_cselect_b32 s35, 10, 0
    s_sub_u32 s34, s34, s35
    s_lshl_b32 s35, s34, 7
    s_add_u32 s36, s30, 1280
    s_add_u32 s30, s30, s35
    s_mul_i32 s35, s34, %d
    s_add_u32 s37, s31, %d
    s_add_u32 s31, s31, s35
    """ % (64*3072, 640*3072))
    if prio: A("s_setprio 0")
    A("s_cmp_lt_u32 s12, 2")
    A("s_cbranch_scc0 %s" % L("loaderB"))
    for var, nwi in (("A", 2), ("B", 1)):
        if var == "B": A.label(L("loaderB"))
        queue = []
        def issue_x(u):
            A("s_add_u32 m0, s32, %d" % ((u % NX)*XSLOT))
            A("s_nop 0")
            for j in range(4):
                A("buffer_load_dwordx4 %s, s[16:19], s30 offen offset:%d%s lds" % (v(2+j), 1024*j, SC))
            A("s_add_u32 s30, s30, 128")
            A("s_cmp_ge_u32 s30, s36")
            A("s_cselect_b32 s35, 1280, 0")
            A("s_sub_u32 s30, s30, s35")
            queue.append(("x", u, 4))
        def issue_w(c):
            for jj in range(nwi):
                A("s_add_u32 m0, s33, %d" % (WBASE + (c % NW)*WSLOT + 4096*jj))
                A("s_nop 0")
                A("buffer_load_dwordx4 %s, s[20:23], s31 offen lds" % v(6+jj))
            A("s_add_u32 s31, s31, %d" % (32*3072))
            A("s_cmp_ge_u32 s31, s37")
            A("s_cselect_b32 s35, %d, 0" % (640*3072))
            A("s_sub_u32 s31, s31, s35")
            queue.append(("w", c, nwi))
        def wait_for(c):
            need = [("w", c)] + ([("x", c//2)] if c % 2 == 0 else [])
            last = max(i for i, q in enumerate(queue) if (q[0], q[1]) in need)
            A("s_waitcnt vmcnt(%d)" % sum(q[2] for q in queue[last+1:]))
        issue_x(0); issue_w(0); issue_w(1)
        nx, nw_ = 1, 2
        for c in range(NCH):
            wait_for(c)
            A("s_barrier")
            while True:
                needw = nw_ < NCH and nw_ < c + NW
                needx = nx < NCH//2 and nx < c//2 + NX
                if needx and (not needw or 2*nx <= nw_):
                    issue_x(nx); nx += 1
                elif needw:
                    issue_w(nw_); nw_ += 1
                else:
                    break
        if var == "A": A("s_branch %s" % L("loader_end"))
    A.label(L("loader_end"))
    if prio: A("s_setprio %d" % prio)
    A.label(L("mlp1_done"))
```

```python
from common import *
import common
from k1 import TILE, POS, INVPOS, tile_const
SLOT = 16384
WOFF = 8192
NCH = 20
NSLOT = 5
OPT = {}
def qkv_map(A):
    A("""
    s_and_b32 s3, s96, 7
    s_lshr_b32 s15, s96, 3
    s_and_b32 s13, s3, 3
    s_lshl_b32 s13, s13, 2
    s_and_b32 s24, s15, 3
    s_add_u32 s13, s13, s24
    s_lshr_b32 s14, s3, 2
    s_lshl_b32 s14, s14, 3
    s_lshr_b32 s24, s15, 2
    s_add_u32 s14, s14, s24
    """)
def qkv_body(A, L, sc1=True, loader_tail=None, loader_head=None):
    SC = " sc1" if sc1 else ""
    qkv_map(A)
    A("s_cmp_ge_u32 s97, 4")
    A("s_cbranch_scc1 %s" % L("qkv_loader"))
    XA, XB, WA, WB = 2, 4, 6, 8
    FR, ACC = 16, 64
    A("""
    s_and_b32 s24, s97, 1
    s_lshr_b32 s25, s97, 1
    v_and_b32 v14, 31, v0
    v_lshrrev_b32 v15, 5, v0
    v_lshrrev_b32 v16, 2, v14
    v_and_b32 v16, 3, v16
    v_xor_b32 v16, v15, v16
    s_lshl_b32 s26, s24, 12
    v_lshlrev_b32 v17, 6, v14
    v_add_u32 v17, s26, v17
    """)
    for st in range(2):
        A("v_xor_b32 v18, %d, v16" % (2*st))
        A("v_lshl_add_u32 %s, v18, 4, v17" % v(XA+st))
        A("v_add_u32 %s, 0x10000, %s" % (v(XB+st), v(XA+st)))
    A("""
    v_lshrrev_b32 v18, 4, v0
    v_and_b32 v19, 15, v0
    v_and_b32 v20, 1, v18
    v_lshlrev_b32 v20, 2, v20
    v_and_b32 v21, 3, v19
    v_add_u32 v20, v20, v21
    v_lshlrev_b32 v20, 3, v20
    v_lshrrev_b32 v21, 2, v19
    v_lshrrev_b32 v22, 1, v18
    v_lshl_add_u32 v22, v22, 3, v21
    v_lshlrev_b32 v22, 8, v22
    v_add_u32 v22, %d, v22
    v_lshlrev_b32 v21, 3, v21
    """ % WOFF)
    A("s_cmp_eq_u32 s25, 0")
    A("s_cbranch_scc0 %s" % L("qkv_nw1"))
    for nw, tiles in ((0, ('A', 'B')), (1, ('C', 'D'))):
        if nw == 1: A.label(L("qkv_nw1"))
        for ti, T in enumerate(tiles):
            c = tile_const(T)
            A("s_mov_b32 s26, 0x%08x" % (c & 0xffffffff))
            A("s_mov_b32 s27, 0x%08x" % (c >> 32))
            A("v_lshrrev_b64 v[24:25], v20, s[26:27]")
            A("v_and_b32 v24, 0xff, v24")
            A("v_xor_b32 v24, v24, v21")
            A("v_lshl_add_u32 %s, v24, 3, v22" % v(WA+ti))
            A("v_add_u32 %s, 0x10000, %s" % (v(WB+ti), v(WA+ti)))
        def fr(p, which): return FR + (p % 3)*16 + which*4
        def reads(p):
            c, st = p // 2, p % 2
            slot = c % NSLOT
            xa, wa, so = (XA, WA, slot*SLOT) if slot < 4 else (XB, WB, 0)
            rr = []
            for t in range(2):
                rr.append("ds_read_b128 %s, %s offset:%d" % (v(fr(p, t), 4), v(xa+st), so + t*2048))
            for t in range(2):
                for u in range(2):
                    rr.append("ds_read_b64_tr_b16 %s, %s offset:%d" % (v(fr(p, 2+t)+2*u, 2), v(wa+t), so + st*4096 + u*1024))
            return [rr[0], rr[2], rr[3], rr[4], rr[5], rr[1]]
        def mfmas(p):
            out = []
            for tm in range(2):
                for tn in range(2):
                    acc = ACC + 16*(2*tm + tn)
                    xf, wf = fr(p, tm), fr(p, 2+tn)
                    aa, bb = (wf, xf) if nw == 0 else (xf, wf)
                    out.append("v_mfma_f32_32x32x16_bf16 %s, %s, %s, %s" % (v(acc, 16), v(aa, 4), v(bb, 4), "0" if p == 0 else v(acc, 16)))
            return out
        A("s_barrier")
        stamp(A, 1)
        for r in reads(0) + reads(1): A(r)
        NP = 2*NCH
        for p in range(NP):
            m = mfmas(p)
            rd = reads(p+2) if p+2 < NP else []
            if p % 2 == 0:
                A("s_waitcnt lgkmcnt(0)")
            if OPT.get("nocomp"):
                if p % 2 == 0 and p+2 < NP: A("s_barrier")
                continue
            A(m[0])
            if p % 2 == 0 and p+2 < NP:
                A("s_barrier")
            k = 0
            for mi in range(1, 4):
                for _ in range(3):
                    if k < len(rd) and mi <= 2:
                        A(rd[k]); k += 1
                A(m[mi])
        A("s_nop 15")
        stamp(A, 2)
        A("""
        s_lshl_b32 s28, s13, 2
        s_lshl_b32 s29, s24, 1
        s_add_u32 s28, s28, s29
        s_lshl_b32 s30, s14, 1
        """)
        P = 16
        if nw == 0:
            A("v_lshlrev_b32 v2, 4, v0")
            A("s_mov_b32 s36, %s" % f32(QSCALE))
            for tm in range(2):
                A("s_add_u32 s31, s28, %d" % tm)
                A("""
                s_lshr_b32 s32, s31, 3
                s_mul_i32 s32, s32, %d
                s_and_b32 s33, s31, 7
                s_lshl_b32 s33, s33, 10
                s_add_u32 s32, s32, s33
                s_lshl_b32 s34, s31, 10
                """ % CHUNK)
                for hd in range(2):
                    accK = ACC + 16*(2*tm + 0) + 8*hd
                    accQ = ACC + 16*(2*tm + 1) + 8*hd
                    pk, pq = P + 8*hd, P + 8*hd + 4
                    A("s_add_u32 s35, s30, %d" % hd)
                    A("s_mul_i32 s37, s35, %d" % HEADKV)
                    A("s_add_u32 s37, s37, s32")
                    A("v_add_u32 v3, s37, v2")
                    for q in range(4):
                        A("v_cvt_pk_bf16_f32 %s, %s, %s" % (v(pk+q), v(accK+2*q), v(accK+2*q+1)))
                    A("global_store_dwordx4 v3, %s, s[10:11]%s" % (v(pk, 4), SC))
                    A("s_lshl_b32 s37, s35, 16")
                    A("s_add_u32 s37, s37, s34")
                    A("s_add_u32 s37, s37, 0x%x" % WS_QLO)
                    A("v_add_u32 v4, s37, v2")
                    for q in range(8):
                        A("v_mul_f32 %s, s36, %s" % (v(accQ+q), v(accQ+q)))
                    for q in range(4):
                        A("v_cvt_pk_bf16_f32 %s, %s, %s" % (v(pq+q), v(accQ+2*q), v(accQ+2*q+1)))
                    A("global_store_dwordx4 v4, %s, s[10:11]%s" % (v(pq, 4), SC))
        else:
            A("""
            v_cmp_gt_u32 vcc, 20, v14
            v_and_b32 v5, 30, v14
            v_cmp_eq_u32 s[40:41], 28, v5
            s_or_b64 s[42:43], vcc, s[40:41]
            v_subrev_u32 v5, 8, v14
            v_cndmask_b32 v5, v14, v5, s[40:41]
            v_lshlrev_b32 v5, 4, v5
            v_mul_u32_u24 v6, %d, v15
            v_add_u32 v5, v5, v6
            v_subrev_u32 v7, 20, v14
            v_cmp_gt_u32 s[44:45], 8, v7
            v_lshrrev_b32 v8, 2, v7
            v_and_b32 v7, 3, v7
            v_lshlrev_b32 v7, 6, v7
            v_lshl_add_u32 v7, v15, 3, v7
            v_mov_b32 v9, 0x3f803f80
            v_cmp_eq_u32 vcc, 29, v14
            v_mov_b32 v11, 0
            s_nop 0
            v_cndmask_b32 v9, v9, v11, vcc
            v_mov_b32 v10, 1.0
            v_mov_b32 v11, %s
            v_cndmask_b32 v10, v10, v11, s[44:45]
            s_mov_b64 s[46:47], exec
            """ % (VB, f32(QSCALE)))
            for tm in range(2):
                A("s_add_u32 s31, s28, %d" % tm)
                A("""
                s_lshr_b32 s32, s31, 3
                s_mul_i32 s32, s32, %d
                s_and_b32 s33, s31, 7
                s_mul_i32 s34, s33, %d
                s_add_u32 s34, s34, s32
                s_add_u32 s34, s34, %d
                s_lshl_b32 s35, s33, 8
                s_add_u32 s35, s35, s32
                s_add_u32 s35, s35, %d
                s_lshl_b32 s38, s31, 8
                s_add_u32 s38, s38, 0x%x
                """ % (CHUNK, VT, OFF_V, OFF_KHI, WS_QHI))
                for tn in range(2):
                    acc = ACC + 16*(2*tm + tn)
                    P = 16 + 16*tn
                    if tn == 1:
                        for q in range(16):
                            A("v_mul_f32 %s, v10, %s" % (v(acc+q), v(acc+q)))
                    for q in range(8):
                        A("v_cvt_pk_bf16_f32 %s, %s, %s" % (v(P+q), v(acc+2*q), v(acc+2*q+1)))
                    A("v_add_u32 v12, s30, v8")
                    if tn == 0:
                        A("s_mov_b32 s37, %d" % HEADKV)
                        A("v_mul_lo_u32 v12, v12, s37")
                        A("v_add3_u32 v12, v12, s35, v7")
                    else:
                        A("v_lshlrev_b32 v12, 14, v12")
                        A("v_add3_u32 v12, v12, s38, v7")
                    A("s_mov_b64 exec, s[44:45]")
                    for q4 in range(4):
                        A("global_store_dwordx2 v12, %s, s[10:11] offset:%d%s" % (v(P+2*q4, 2), 16*q4, SC))
                    A("s_mov_b64 exec, s[46:47]")
                    A("s_add_u32 s37, s30, %d" % tn)
                    A("s_mul_i32 s37, s37, %d" % HEADKV)
                    A("s_add_u32 s37, s37, s34")
                    A("v_add_u32 v13, s37, v5")
                    for q in range(8):
                        A("v_cndmask_b32 %s, %s, v9, s[40:41]" % (v(P+8+q), v(P+q)))
                    A("s_mov_b64 exec, s[42:43]")
                    A("global_store_dwordx4 v13, %s, s[10:11]%s" % (v(P+8, 4), SC))
                    A("global_store_dwordx4 v13, %s, s[10:11] offset:%d%s" % (v(P+12, 4), 2*VB, SC))
                    A("s_mov_b64 exec, s[46:47]")
                    A("s_nop 1")
        A("s_branch %s" % L("qkv_done"))
    A.label(L("qkv_loader"))
    A("""
    s_sub_u32 s12, s97, 4
    s_mov_b32 s16, s4
    s_mov_b32 s17, s5
    s_mov_b32 s18, %d
    s_mov_b32 s19, 0x20000
    s_mov_b32 s20, s6
    s_mov_b32 s21, s7
    s_mov_b32 s22, %d
    s_mov_b32 s23, 0x20000
    v_lshrrev_b32 v14, 2, v0
    v_mul_u32_u24 v14, 1280, v14
    v_lshrrev_b32 v15, 4, v0
    v_xor_b32 v16, v15, v0
    v_and_b32 v16, 3, v16
    v_lshl_add_u32 v2, v16, 4, v14
    v_add_u32 v3, %d, v2
    """ % (S_*D_*2, D_*3*D_*2, 16*1280 - 1024))
    inv = 0
    for p, g in enumerate(INVPOS): inv |= g << (4*p)
    A("""
    v_and_b32 v21, 15, v0
    v_lshlrev_b32 v22, 2, v15
    v_xor_b32 v21, v21, v22
    v_lshlrev_b32 v21, 2, v21
    s_mov_b32 s26, 0x%08x
    s_mov_b32 s27, 0x%08x
    v_lshrrev_b64 v[22:23], v21, s[26:27]
    v_and_b32 v22, 15, v22
    v_mul_u32_u24 v23, 52, v22
    v_lshrrev_b32 v23, 8, v23
    v_mul_u32_u24 v21, 5, v23
    v_sub_u32 v22, v22, v21
    v_lshlrev_b32 v22, 4, v22
    v_mul_u32_u24 v23, 1280, v23
    v_add_u32 v22, v22, v23
    v_mul_u32_u24 v23, 3840, v15
    v_add_u32 v6, v22, v23
    v_add_u32 v7, %d, v6
    s_lshl_b32 s30, s13, 7
    s_lshl_b32 s26, s12, 5
    s_add_u32 s30, s30, s26
    s_mul_i32 s30, s30, 1280
    s_mul_i32 s31, s12, %d
    s_mul_i32 s26, s14, 80
    s_add_u32 s31, s31, s26
    s_lshl_b32 s32, s12, 11
    """ % (inv & 0xffffffff, inv >> 32, 4*3840 - 1024, 8*3840))
    def issue(c):
        if OPT.get("nodma"): return
        slot = c % NSLOT
        A("s_add_u32 m0, s32, %d" % (slot*SLOT))
        A("s_nop 0")
        for j in range(2):
            A("buffer_load_dwordx4 %s, s[16:19], s30 offen offset:%d lds" % (v(2+j), 1024*j))
        A("s_add_u32 m0, s32, %d" % (slot*SLOT + WOFF))
        A("s_add_u32 s30, s30, 64")
        for j in range(2):
            A("buffer_load_dwordx4 %s, s[20:23], s31 offen offset:%d lds" % (v(6+j), 1024*j))
        A("s_add_u32 s31, s31, %d" % (32*3840))
    if loader_head: loader_head(A)
    loader_loop(A, issue, NCH, NSLOT, 4)
    if loader_tail: loader_tail(A)
    A.label(L("qkv_done"))

def ln_body(A, L, sc1=True):
    SC = " sc1" if sc1 else ""
    A("""
    s_lshl_b32 s24, s96, 3
    s_add_u32 s24, s24, s97
    s_mul_i32 s25, s24, 1280
    v_lshlrev_b32 v10, 4, v0
    v_lshlrev_b32 v11, 2, v0
    v_add_u32 v12, s25, v10
    v_add_u32 v13, s25, v11
    global_load_dwordx4 v[16:19], v12, s[4:5]
    global_load_dword v20, v13, s[4:5] offset:1024
    global_load_dwordx4 v[32:35], v10, s[8:9]
    global_load_dword v36, v11, s[8:9] offset:1024
    """)
    def unpack(dst, src16, src4):
        for q in range(4):
            A("v_lshlrev_b32 %s, 16, %s" % (v(dst+2*q), v(src16+q)))
            A("v_and_b32 %s, 0xffff0000, %s" % (v(dst+2*q+1), v(src16+q)))
        A("v_lshlrev_b32 %s, 16, %s" % (v(dst+8), v(src4)))
        A("v_and_b32 %s, 0xffff0000, %s" % (v(dst+9), v(src4)))
    return unpack

def ln_finish(A, unpack, sc1=True):
    SC = " sc1" if sc1 else ""
    unpack(40, 16, 20); unpack(60, 32, 36)
    A("v_add_f32 v70, v40, v41")
    A("v_mul_f32 v72, v40, v60")
    for q in range(2, 10): A("v_add_f32 v70, v70, %s" % v(40+q))
    for q in range(1, 10): A("v_fmac_f32 v72, %s, %s" % (v(40+q), v(60+q)))
    wave_reduce_add(A, [70, 72], [74, 76])
    A("s_mov_b32 s26, %s" % f32(1.0/640))
    A("v_mul_f32 v70, s26, v70")
    for q in range(10): A("v_sub_f32 %s, %s, v70" % (v(40+q), v(40+q)))
    A("v_mul_f32 v74, v40, v40")
    for q in range(1, 10): A("v_fmac_f32 v74, %s, %s" % (v(40+q), v(40+q)))
    wave_reduce_add(A, [74], [76])
    A("s_mov_b32 s27, %s" % f32(1e-5))
    A("s_mov_b32 s28, %s" % f32(-1.4426950408889634))
    A("v_mov_b32 v78, s27")
    A("v_fmac_f32 v78, s26, v74")
    A("v_rsq_f32 v78, v78")
    A("v_mul_f32 v72, s28, v72")
    A("v_exp_f32 v72, v72")
    for q in range(10): A("v_mul_f32 %s, %s, v78" % (v(40+q), v(40+q)))
    A("v_add_f32 v72, 1.0, v72")
    A("v_rcp_f32 v72, v72")
    for q in range(5): A("v_cvt_pk_bf16_f32 %s, %s, %s" % (v(80+q), v(40+2*q), v(40+2*q+1)))
    A("s_add_u32 s25, s25, 0x%x" % WS_Y)
    A("v_add_u32 v12, s25, v10")
    A("v_add_u32 v13, s25, v11")
    A("global_store_dwordx4 v12, v[80:83], s[10:11]%s" % SC)
    A("global_store_dword v13, v84, s[10:11] offset:1024%s" % SC)
    A("s_lshl_b32 s24, s24, 2")
    A("s_add_u32 s24, s24, 0x%x" % WS_G)
    A("v_mov_b32 v14, s24")
    A("s_mov_b64 exec, 1")
    A("global_store_dword v14, v72, s[10:11]%s" % SC)
    A("s_mov_b64 exec, -1")
```

```python
from common import *
import common
XSLOT, NX = 16384, 3
WBASE, WSLOT, NW = 49152, 8192, 4
NCH = 20
OPT = {}
def check_conflicts():
    for t in range(4):
        ad = []
        for l in range(64):
            G, i = l >> 4, l & 15
            cg = 4*(G & 1) + (i & 3)
            c = 4*t + cg//2; h = cg % 2
            r = i >> 2
            ad.append((8*(G >> 1) + r)*256 + ((c ^ (r << 2))*16) + h*8)
        print("qkv2 W tile", t, conflicts(ad, 8))
def qkv_map(A):
    A("""
    s_and_b32 s3, s96, 7
    s_lshr_b32 s15, s96, 3
    s_and_b32 s13, s3, 3
    s_lshl_b32 s13, s13, 2
    s_and_b32 s24, s15, 3
    s_add_u32 s13, s13, s24
    s_lshr_b32 s14, s3, 2
    s_lshl_b32 s14, s14, 3
    s_lshr_b32 s24, s15, 2
    s_add_u32 s14, s14, s24
    """)
def qkv_body(A, L, sc1=True, loader_tail=None):
    SC = " sc1" if sc1 else ""
    A("s_cmp_ge_u32 s97, 4")
    A("s_cbranch_scc1 %s" % L("qkv_loader"))
    XA, WA = 2, 6
    FR, ACC = 16, 64
    A("""
    s_and_b32 s24, s97, 1
    s_lshr_b32 s25, s97, 1
    v_and_b32 v14, 31, v0
    v_lshrrev_b32 v15, 5, v0
    v_lshrrev_b32 v16, 1, v14
    v_and_b32 v16, 7, v16
    v_xor_b32 v16, v15, v16
    s_lshl_b32 s26, s24, 13
    v_lshlrev_b32 v17, 7, v14
    v_add_u32 v17, s26, v17
    """)
    for st in range(4):
        A("v_xor_b32 v18, %d, v16" % (2*st))
        A("v_lshl_add_u32 %s, v18, 4, v17" % v(XA+st))
    A("""
    v_lshrrev_b32 v18, 4, v0
    v_and_b32 v19, 15, v0
    v_and_b32 v20, 1, v18
    v_lshlrev_b32 v20, 2, v20
    v_and_b32 v21, 3, v19
    v_add_u32 v20, v20, v21
    v_lshrrev_b32 v21, 2, v19
    v_lshrrev_b32 v22, 1, v18
    v_lshl_add_u32 v22, v22, 3, v21
    v_lshlrev_b32 v22, 8, v22
    v_add_u32 v22, %d, v22
    v_lshlrev_b32 v21, 2, v21
    s_lshl_b32 s26, s25, 3
    """ % WBASE)
    A("""
    s_mul_i32 s28, s14, 52
    s_lshr_b32 s28, s28, 8
    s_mul_i32 s29, s28, 5
    s_sub_u32 s29, s14, s29
    s_cmp_eq_u32 s28, 2
    s_cbranch_scc1 %s
    """ % L("qkv_v"))
    def waddr(perm):
        if perm:
            cm = 0
            for cg, x in enumerate([0, 2, 1, 3, 4, 6, 5, 7]): cm |= x << (4*cg)
            A("v_lshlrev_b32 v20, 2, v20")
            A("s_mov_b32 s27, 0x%08x" % cm)
            A("v_lshrrev_b32 v20, v20, s27")
            A("v_and_b32 v20, 7, v20")
        A("v_and_b32 v23, 1, v20")
        A("v_lshl_add_u32 v22, v23, 3, v22")
        A("v_lshrrev_b32 v20, 1, v20")
        for tn in range(2):
            A("s_add_u32 s27, s26, %d" % (4*tn))
            A("v_add_u32 v23, s27, v20")
            A("v_xor_b32 v23, v23, v21")
            A("v_lshl_add_u32 %s, v23, 4, v22" % v(WA+tn))
    for vt in (0, 1):
        if vt: A.label(L("qkv_v"))
        waddr(not vt)
        def fr(p, which): return FR + (p % 3)*16 + which*4
        def reads(p):
            xs = (p // 4) % NX; s4 = p % 4
            ws = (p // 2) % NW; st = p % 2
            rr = []
            for t in range(2):
                rr.append("ds_read_b128 %s, %s offset:%d" % (v(fr(p, t), 4), v(XA+s4), xs*XSLOT + t*4096))
            for t in range(2):
                for u in range(2):
                    rr.append("ds_read_b64_tr_b16 %s, %s offset:%d" % (v(fr(p, 2+t)+2*u, 2), v(WA+t), ws*WSLOT + st*4096 + u*1024))
            return [rr[0], rr[2], rr[3], rr[4], rr[5], rr[1]]
        def mfmas(p):
            out = []
            for tm in range(2):
                for tn in range(2):
                    acc = ACC + 16*(2*tm + tn)
                    xf, wf = fr(p, tm), fr(p, 2+tn)
                    aa, bb = (xf, wf) if vt else (wf, xf)
                    out.append("v_mfma_f32_32x32x16_bf16 %s, %s, %s, %s" % (v(acc, 16), v(aa, 4), v(bb, 4), "0" if p == 0 else v(acc, 16)))
            return out
        A("s_barrier")
        stamp(A, 1)
        for r in reads(0) + reads(1): A(r)
        NP = 2*NCH
        for p in range(NP):
            m = mfmas(p)
            rd = reads(p+2) if p+2 < NP else []
            if p % 2 == 0:
                A("s_waitcnt lgkmcnt(0)")
            if OPT.get("nocomp"):
                if p % 2 == 0 and p+2 < NP: A("s_barrier")
                continue
            A(m[0])
            if p % 2 == 0 and p+2 < NP:
                A("s_barrier")
            k = 0
            for mi in range(1, 4):
                for _ in range(3):
                    if k < len(rd) and mi <= 2:
                        A(rd[k]); k += 1
                A(m[mi])
        stamp(A, 2)
        A("""
        s_lshl_b32 s30, s13, 2
        s_lshl_b32 s31, s24, 1
        s_add_u32 s30, s30, s31
        """)
        if not vt:
            A("""
            s_lshl_b32 s31, s29, 4
            s_lshl_b32 s32, s25, 3
            s_add_u32 s31, s31, s32
            v_add_u32 v8, s31, v15
            v_mul_u32_u24 v8, %d, v8
            s_cmp_eq_u32 s28, 0
            s_cselect_b32 s36, %s, 1.0
            s_cselect_b32 s33, 0x%x, 0
            s_lshl_b32 s34, s30, 9
            s_add_u32 s34, s34, s33
            s_add_u32 s34, s34, 0x%x
            v_lshl_add_u32 v9, v14, 4, s34
            v_add_u32 v8, v8, v9
            """ % (OSTR, f32(QSCALE), WS_QLO - WS_K, WS_K))
            for tn in range(2):
                for hf in range(2):
                    A("v_add_u32 %s, 0x%x, v8" % (v(16 + 2*tn + hf), (4*tn + 2*hf)*OSTR))
            A("s_nop 7")
            for tm in range(2):
                for tn in range(2):
                    acc = ACC + 16*(2*tm + tn)
                    P = 32 + 8*tn + 16*tm
                    for r in range(16):
                        A("v_mul_f32 %s, s36, %s" % (v(acc+r), v(acc+r)))
                    for q in range(8):
                        A("v_cvt_pk_bf16_f32 %s, %s, %s" % (v(P+q), v(acc+2*q), v(acc+2*q+1)))
                    A("global_store_dwordx4 %s, %s, s[10:11] offset:%d%s" % (v(16 + 2*tn), v(P, 4), 512*tm, SC))
                    A("global_store_dwordx4 %s, %s, s[10:11] offset:%d%s" % (v(16 + 2*tn + 1), v(P+4, 4), 512*tm, SC))
        else:
            A("""
            s_lshl_b32 s31, s29, 7
            s_lshl_b32 s32, s25, 6
            s_add_u32 s31, s31, s32
            v_and_b32 v8, 15, v0
            v_add_u32 v8, s31, v8
            v_lshlrev_b32 v8, 6, v8
            v_bfe_u32 v9, v0, 4, 1
            v_lshlrev_b32 v9, 5, v9
            v_lshl_add_u32 v9, v15, 4, v9
            s_mul_i32 s32, s30, %d
            s_add_u32 s32, s32, 0x%x
            v_add3_u32 v16, v8, v9, s32
            v_add_u32 v17, %d, v16
            s_nop 7
            """ % (VTS, WS_VT, VTS))
            for tm in range(2):
                for tn in range(2):
                    acc = ACC + 16*(2*tm + tn)
                    P = 32 + 8*tn + 16*tm
                    for q in range(8):
                        A("v_cvt_pk_bf16_f32 %s, %s, %s" % (v(P+q), v(acc+2*q), v(acc+2*q+1)))
                    A("s_nop 1")
                    for q in range(4):
                        A("v_permlane16_swap_b32 %s, %s" % (v(P+q), v(P+4+q)))
                    A("global_store_dwordx4 %s, %s, s[10:11] offset:%d%s" % (v(16 + tm), v(P, 4), 2048*tn, SC))
                    A("global_store_dwordx4 %s, %s, s[10:11] offset:%d%s" % (v(16 + tm), v(P+4, 4), 2048*tn + 1024, SC))
        A("s_branch %s" % L("qkv_done"))
    A.label(L("qkv_loader"))
    A("""
    s_sub_u32 s12, s97, 4
    s_mov_b32 s16, s4
    s_mov_b32 s17, s5
    s_mov_b32 s18, %d
    s_mov_b32 s19, 0x20000
    s_mov_b32 s20, s6
    s_mov_b32 s21, s7
    s_mov_b32 s22, %d
    s_mov_b32 s23, 0x20000
    v_lshrrev_b32 v14, 3, v0
    v_mul_u32_u24 v14, 1280, v14
    v_lshrrev_b32 v15, 4, v0
    v_and_b32 v21, 7, v0
    """ % (S_*D_*2, D_*3*D_*2))
    for j in range(4):
        A("v_add_u32 v22, %d, v15" % (4*j))
        A("v_and_b32 v22, 7, v22")
        A("v_xor_b32 v22, v21, v22")
        A("v_lshl_add_u32 %s, v22, 4, v14" % v(2+j))
        if j: A("v_add_u32 %s, %d, %s" % (v(2+j), j*(10240-1024), v(2+j)))
    A("""
    v_and_b32 v21, 15, v0
    v_lshlrev_b32 v22, 2, v15
    v_xor_b32 v21, v21, v22
    v_lshlrev_b32 v21, 4, v21
    v_mul_u32_u24 v23, 3840, v15
    v_add_u32 v6, v21, v23
    v_add_u32 v7, %d, v6
    s_lshl_b32 s30, s13, 7
    s_lshl_b32 s26, s12, 5
    s_add_u32 s30, s30, s26
    s_mul_i32 s30, s30, 1280
    s_mul_i32 s31, s12, %d
    s_lshl_b32 s26, s14, 8
    s_add_u32 s31, s31, s26
    s_lshl_b32 s32, s12, 12
    s_lshl_b32 s33, s12, 11
    """ % (4*3840 - 1024, 8*3840))
    ROT = OPT.get("rot", 1)
    if ROT:
        A("""
        s_lshr_b32 s34, s96, 3
        s_and_b32 s35, s34, 3
        s_lshr_b32 s34, s34, 2
        s_mul_i32 s35, s35, 3
        s_add_u32 s34, s34, s35
        s_cmp_ge_u32 s34, 10
        s_cselect_b32 s35, 10, 0
        s_sub_u32 s34, s34, s35
        s_lshl_b32 s35, s34, 7
        s_add_u32 s36, s30, 1280
        s_add_u32 s30, s30, s35
        s_mul_i32 s35, s34, %d
        s_add_u32 s37, s31, %d
        s_add_u32 s31, s31, s35
        """ % (64*3840, 640*3840))
    queue = []
    def issue_x(u):
        if OPT.get("nodma"): queue.append(("x", u, 0)); return
        A("s_add_u32 m0, s32, %d" % ((u % NX)*XSLOT))
        A("s_nop 0")
        for j in range(4):
            A("buffer_load_dwordx4 %s, s[16:19], s30 offen offset:%d lds" % (v(2+j), 1024*j))
        A("s_add_u32 s30, s30, 128")
        if ROT:
            A("s_cmp_ge_u32 s30, s36")
            A("s_cselect_b32 s35, 1280, 0")
            A("s_sub_u32 s30, s30, s35")
        queue.append(("x", u, 4))
    def issue_w(c):
        if OPT.get("nodma"): queue.append(("w", c, 0)); return
        A("s_add_u32 m0, s33, %d" % (WBASE + (c % NW)*WSLOT))
        A("s_nop 0")
        for j in range(2):
            A("buffer_load_dwordx4 %s, s[20:23], s31 offen offset:%d lds" % (v(6+j), 1024*j))
        A("s_add_u32 s31, s31, %d" % (32*3840))
        if ROT:
            A("s_cmp_ge_u32 s31, s37")
            A("s_cselect_b32 s35, %d, 0" % (640*3840))
            A("s_sub_u32 s31, s31, s35")
        queue.append(("w", c, 2))
    def wait_for(c):
        need = [("w", c)] + ([("x", c//2)] if c % 2 == 0 else [])
        last = max(i for i, q in enumerate(queue) if (q[0], q[1]) in need)
        A("s_waitcnt vmcnt(%d)" % sum(q[2] for q in queue[last+1:]))
    issue_x(0); issue_w(0); issue_w(1)
    nx, nw_ = 1, 2
    for c in range(NCH):
        wait_for(c)
        A("s_barrier")
        while True:
            prog = False
            needw = nw_ < NCH and nw_ < c + NW
            needx = nx < NCH//2 and nx < c//2 + NX
            if needx and (not needw or 2*nx <= nw_):
                issue_x(nx); nx += 1; prog = True
            elif needw:
                issue_w(nw_); nw_ += 1; prog = True
            if not prog: break
    if loader_tail: loader_tail(A)
    A.label(L("qkv_done"))

if __name__ == "__main__":
    check_conflicts()
    for n in range(160): assert (n*52429) >> 18 == n//5
    for n in range(660): assert (n*52429) >> 20 == n//20
```

```python
from asmlib import *
S_, D_, H_, DH, F_ = 2048, 640, 32, 20, 1536
KA_X, KA_WQKV, KA_WO, KA_BX, KA_W1, KA_B1, KA_W2, KA_B2, KA_GW, KA_OUT, KA_DBG, KA_WS = [8*i for i in range(12)]
CHUNK = 21504
HEADKV = 8*CHUNK
OFF_KHI = 8192
OFF_V = 10240
VT = 1408
VB = 352
WS_KV   = 0
WS_QLO  = 0x600000
WS_QHI  = 0x800000
WS_Y    = 0x900000
WS_G    = 0xC00000
WS_H    = 0xD00000
WS_O    = 0x1400000
WS_BMIX = 0x1800000
WS_END  = 0x1E00000
QSCALE = 1.4426950408889634 / (20 ** 0.5)
import struct
def f32(x):
    return "0x%08x" % struct.unpack("<I", struct.pack("<f", x))[0]

def wave_reduce_add(A, regs, tmps):
    n = len(regs)
    def pad(k):
        need = k - (n - 1)
        if need > 0:
            A("s_nop %d" % (need - 1))
    for sh in (8, 4, 2, 1):
        pad(2)
        for r in regs:
            A("v_add_f32_dpp %s, %s, %s row_ror:%d row_mask:0xf bank_mask:0xf" % (v(r), v(r), v(r), sh))
    for sw in ("v_permlane16_swap_b32", "v_permlane32_swap_b32"):
        for r, t in zip(regs, tmps):
            A("v_mov_b32 %s, %s" % (v(t), v(r)))
        pad(2)
        A("s_nop 0")
        for r, t in zip(regs, tmps):
            A("%s %s, %s" % (sw, v(r), v(t)))
        pad(1)
        A("s_nop 0")
        for r, t in zip(regs, tmps):
            A("v_add_f32 %s, %s, %s" % (v(r), v(r), v(t)))

WS_STAMP = 0x2000000
STAMPS = False
NSTAMP = 16
def stamp(A, idx, wave="s97", who=0):
    if not STAMPS: return
    lab = A.new("st")
    A("s_cmp_lg_u32 %s, %d" % (wave, who))
    A("s_cbranch_scc1 %s" % lab)
    A("s_memrealtime s[58:59]")
    A("s_memtime s[98:99]")
    A("s_waitcnt lgkmcnt(0)")
    A("s_mov_b32 s%d, s58" % (60+2*idx))
    A("s_mov_b32 s%d, s98" % (61+2*idx))
    A.label(lab)
def stamp_init(A):
    if not STAMPS: return
    for i in range(60, 60+2*NSTAMP):
        A("s_mov_b32 s%d, 0" % i)
DBGOUT = None
def stamp_flush(A, kid, wave="s97", who=0, wgreg="s96"):
    if not STAMPS: return
    if DBGOUT:
        idx, slot0, mx = DBGOUT[kid]
        lab, l2 = A.new("stf"), A.new("stg")
        A("s_waitcnt lgkmcnt(0)")
        A("s_cmp_lg_u32 %s, %d" % (wave, who))
        A("s_cbranch_scc1 %s" % lab)
        A("s_load_dwordx2 s[56:57], s[0:1], %d" % KA_DBG)
        A("s_mov_b64 exec, 1")
        A("s_waitcnt lgkmcnt(0)")
        for (st, slot, inv) in mx:
            A("v_mov_b32 v0, %d" % (4*slot))
            A("v_mov_b32 v2, s%d" % (60+2*st))
            if inv: A("v_not_b32 v2, v2")
            A("global_atomic_umax v0, v2, s[56:57]")
        A("s_cmp_lg_u32 %s, 100" % wgreg)
        A("s_cbranch_scc1 %s" % l2)
        for n, st in enumerate(idx):
            A("v_mov_b32 v0, %d" % (4*(slot0+n)))
            A("v_mov_b32 v2, s%d" % (60+2*st))
            A("global_store_dword v0, v2, s[56:57]")
        A.label(l2)
        A("s_mov_b64 exec, -1")
        A.label(lab)
        return
    lab = A.new("stf")
    A("s_waitcnt lgkmcnt(0)")
    A("s_cmp_lg_u32 %s, %d" % (wave, who))
    A("s_cbranch_scc1 %s" % lab)
    A("s_mov_b64 exec, 1")
    A("s_lshl_b32 s58, %s, 8" % wgreg)
    A("s_add_u32 s58, s58, 0x%x" % (WS_STAMP + kid*0x20000))
    A("v_mov_b32 v0, s58")
    for i in range(NSTAMP//2):
        for j in range(4):
            A("v_mov_b32 v%d, s%d" % (2+j, 60+4*i+j))
        A("global_store_dwordx4 v0, v[2:5], s[10:11] offset:%d" % (16*i))
        A("s_nop 1")
    A("s_mov_b64 exec, -1")
    A.label(lab)

WS_FLAG = 0x1F00000
FL_LN, FL_QKV, FL_H, FL_O, FL_NONCE = 0x0, 0x800, 0x1000, 0x1800, 0x2000
def nonce_make(A):
    A("""
    s_load_dwordx2 s[8:9], s[0:1], %d
    s_mov_b64 exec, 1
    v_mov_b32 v2, 0x%x
    global_load_dword v3, v2, s[10:11] sc1
    s_waitcnt vmcnt(0) lgkmcnt(0)
    v_add_u32 v3, 1, v3
    v_max_u32 v3, 1, v3
    global_store_dword v2, v3, s[10:11] sc1
    v_mov_b32 v2, 0
    global_store_dword v2, v3, s[8:9] sc1
    s_mov_b64 exec, -1
    """ % (KA_DBG, WS_FLAG + FL_NONCE))
def nonce_get(A):
    lp, ok = A.new("ng"), A.new("ngok")
    A("""
    s_load_dwordx2 s[8:9], s[0:1], %d
    v_mov_b32 v2, 0
    s_mov_b32 s56, 0
    s_waitcnt lgkmcnt(0)
    """ % KA_DBG)
    A.label(lp)
    A("""
    global_load_dword v3, v2, s[8:9] sc1
    s_add_u32 s56, s56, 1
    s_waitcnt vmcnt(0)
    v_readfirstlane_b32 s100, v3
    s_nop 3
    s_cmp_lg_u32 s100, 0
    s_cbranch_scc1 %s
    s_sleep 4
    s_cmp_lt_u32 s56, 0x8000
    s_cbranch_scc1 %s
    """ % (ok, lp))
    A.label(ok)
def flag_signal(A, off, grp_sreg, member_sreg):
    A("""
    s_lshl_b32 s56, %s, 7
    s_lshl_b32 s57, %s, 2
    s_add_u32 s56, s56, s57
    s_add_u32 s56, s56, 0x%x
    v_mov_b32 v2, s56
    v_mov_b32 v3, s100
    s_mov_b64 exec, 1
    global_store_dword v2, v3, s[10:11] sc1
    s_mov_b64 exec, -1
    """ % (grp_sreg, member_sreg, WS_FLAG + off))
def flag_wait(A, off, grp_sreg, n):
    lp, ok = A.new("fw"), A.new("fwok")
    A("""
    s_lshl_b32 s56, %s, 7
    s_add_u32 s56, s56, 0x%x
    v_mbcnt_lo_u32_b32 v2, -1, 0
    v_mbcnt_hi_u32_b32 v2, -1, v2
    v_min_u32 v2, %d, v2
    v_lshl_add_u32 v2, v2, 2, s56
    s_mov_b32 s57, 0
    """ % (grp_sreg, WS_FLAG + off, n-1))
    A.label(lp)
    A("""
    global_load_dword v3, v2, s[10:11] sc1
    s_add_u32 s57, s57, 1
    s_waitcnt vmcnt(0)
    v_cmp_ne_u32 vcc, s100, v3
    s_cbranch_vccz %s
    s_sleep 2
    s_cmp_lt_u32 s57, 0x8000
    s_cbranch_scc1 %s
    """ % (ok, lp))
    A.label(ok)

def prefetch(A, base, start_sreg, nbytes, wave_sreg, nwaves, vlane, vt, vdst, stride=128, soff=0):
    per_instr = 64*stride
    ninstr = -(-nbytes // per_instr)
    per_wave = -(-ninstr // nwaves)
    A("s_mul_i32 s98, %s, %d" % (wave_sreg, per_wave*per_instr))
    A("s_add_u32 s98, s98, %s" % start_sreg)
    if soff: A("s_add_u32 s98, s98, 0x%x" % soff)
    A("v_mul_u32_u24 %s, %d, %s" % (v(vt), stride, v(vlane)))
    A("v_add_u32 %s, s98, %s" % (v(vt), v(vt)))
    A("s_add_u32 s99, %s, 0x%x" % (start_sreg, soff + nbytes - 4))
    for i in range(per_wave):
        A("v_min_u32 %s, s99, %s" % (v(vt+1), v(vt)))
        A("global_load_dword %s, %s, %s" % (v(vdst), v(vt+1), base))
        if i + 1 < per_wave:
            A("v_add_u32 %s, %d, %s" % (v(vt), per_instr, v(vt)))
    return per_wave

def loader_loop(A, issue, NCH, NSLOT, per):
    first = min(2, NSLOT, NCH)
    issued = 0
    for c in range(first):
        issue(c); issued += 1
    for c in range(NCH):
        A("s_waitcnt vmcnt(%d)" % (per*(issued - c - 1)))
        A("s_barrier")
        while issued < NCH and issued < c + NSLOT:
            issue(issued); issued += 1

KT = 1280
KHS = 64*KT
WS_K = 0x0
WS_VT = 0x300000
VTS = 640*64
VSTR = 4224
VROW = 528
OSTR = 32768 + 128
AOFFV = 3*4096
ASLOT = AOFFV + 22*VROW

OTB = 640*128
```
